```python
import torch

def _softmax(x, axis=-1):
    return torch.softmax(x, dim=axis)
def _gelu(x):
    return torch.nn.functional.gelu(x, approximate="tanh")
def _silu(x):
    return torch.nn.functional.silu(x)
def _sigmoid(x):
    return torch.sigmoid(x)
def _layernorm(x, axis=-1, eps=1e-5):
    m = x.mean(dim=axis, keepdim=True)
    v = x.var(dim=axis, keepdim=True, unbiased=False)
    return (x - m) / torch.sqrt(v + eps)
def _scatter_add(tgt, idx, src, axis=0):
    return tgt.clone().index_add_(axis, idx, src)
def _segment_sum(src, seg, n):
    out = torch.zeros((n,) + src.shape[1:], dtype=src.dtype)
    return out.index_add_(0, seg, src)
def _pad(x, pw):
    flat = tuple(v for pair in reversed(pw) for v in pair)
    return torch.nn.functional.pad(x, flat)

kernel_name = 'concat_heads__ssm_conv_s5__ssm_conv_s5__prompt'

def setup_inputs():

    _w = (lambda a: (lambda t: t.to(torch.bfloat16) if t.is_floating_point() else t)(torch.as_tensor(a)))
    def _A_setup():
        B, S, D = 1, 2048, 576
        P = D
        Lambda_re = -0.5 * (lambda _x: torch.exp(torch.as_tensor(_x)))((lambda *s: torch.randn(*s, dtype=torch.bfloat16) * 0.2)(P))
        Lambda_im = (lambda *s: torch.randn(*s, dtype=torch.bfloat16) * 0.4)(P) * 1.0
        B_re = (lambda *s: torch.randn(*s, dtype=torch.bfloat16) * 0.2)(P, D) * (D ** -0.5)
        B_im = (lambda *s: torch.randn(*s, dtype=torch.bfloat16) * 0.2)(P, D) * (D ** -0.5)
        C_re = (lambda *s: torch.randn(*s, dtype=torch.bfloat16) * 0.2)(D, P) * (P ** -0.5)
        C_im = (lambda *s: torch.randn(*s, dtype=torch.bfloat16) * 0.2)(D, P) * (P ** -0.5)
        log_dt = (lambda *s: torch.randn(*s, dtype=torch.bfloat16) * 0.2)(P) * 0.3 - 2.0
        Dskip = (lambda *s: torch.randn(*s, dtype=torch.bfloat16) * 0.05)(D)
        return {
            "x": _w((lambda *s: torch.randn(*s, dtype=torch.bfloat16) * 0.05)(B, S, D)),
            "Lambda_re": _w(Lambda_re),
            "Lambda_im": _w(Lambda_im),
            "B_re": _w(B_re),
            "B_im": _w(B_im),
            "C_re": _w(C_re),
            "C_im": _w(C_im),
            "log_dt": _w(log_dt),
            "Dskip": _w(Dskip),
        }
    _A_in = _A_setup()

    def _B_setup():
        B, S, D = 1, 2048, 576
        P = D
        Lambda_re = -0.5 * (lambda _x: torch.exp(torch.as_tensor(_x)))((lambda *s: torch.randn(*s, dtype=torch.bfloat16) * 0.2)(P))
        Lambda_im = (lambda *s: torch.randn(*s, dtype=torch.bfloat16) * 0.4)(P) * 1.0
        B_re = (lambda *s: torch.randn(*s, dtype=torch.bfloat16) * 0.2)(P, D) * (D ** -0.5)
        B_im = (lambda *s: torch.randn(*s, dtype=torch.bfloat16) * 0.2)(P, D) * (D ** -0.5)
        C_re = (lambda *s: torch.randn(*s, dtype=torch.bfloat16) * 0.2)(D, P) * (P ** -0.5)
        C_im = (lambda *s: torch.randn(*s, dtype=torch.bfloat16) * 0.2)(D, P) * (P ** -0.5)
        log_dt = (lambda *s: torch.randn(*s, dtype=torch.bfloat16) * 0.2)(P) * 0.3 - 2.0
        Dskip = (lambda *s: torch.randn(*s, dtype=torch.bfloat16) * 0.05)(D)
        return {
            "x": _w((lambda *s: torch.randn(*s, dtype=torch.bfloat16) * 0.05)(B, S, D)),
            "Lambda_re": _w(Lambda_re),
            "Lambda_im": _w(Lambda_im),
            "B_re": _w(B_re),
            "B_im": _w(B_im),
            "C_re": _w(C_re),
            "C_im": _w(C_im),
            "log_dt": _w(log_dt),
            "Dskip": _w(Dskip),
        }
    _B_in = _B_setup()

    return {
        "A_x": _A_in["x"],
        "A_Lambda_re": _A_in["Lambda_re"],
        "A_Lambda_im": _A_in["Lambda_im"],
        "A_B_re": _A_in["B_re"],
        "A_B_im": _A_in["B_im"],
        "A_C_re": _A_in["C_re"],
        "A_C_im": _A_in["C_im"],
        "A_log_dt": _A_in["log_dt"],
        "A_Dskip": _A_in["Dskip"],
        "B_x": _B_in["x"],
        "B_Lambda_re": _B_in["Lambda_re"],
        "B_Lambda_im": _B_in["Lambda_im"],
        "B_B_re": _B_in["B_re"],
        "B_B_im": _B_in["B_im"],
        "B_C_re": _B_in["C_re"],
        "B_C_im": _B_in["C_im"],
        "B_log_dt": _B_in["log_dt"],
        "B_Dskip": _B_in["Dskip"],
    }

def reference(A_x, A_Lambda_re, A_Lambda_im, A_B_re, A_B_im, A_C_re, A_C_im, A_log_dt, A_Dskip, B_x, B_Lambda_re, B_Lambda_im, B_B_re, B_B_im, B_C_re, B_C_im, B_log_dt, B_Dskip):
    def _A_ref(x, Lambda_re, Lambda_im, B_re, B_im, C_re, C_im, log_dt, Dskip):
        Bsz, L, H = x.shape
        Lam = Lambda_re + 1j * Lambda_im
        Bmat = B_re + 1j * B_im
        Cmat = C_re + 1j * C_im
        dt = torch.exp(log_dt)
        Lam_bar = torch.exp(dt * Lam)
        B_bar = ((Lam_bar - 1.0) / Lam)[:, None] * Bmat
        Bu = torch.einsum("bld,pd->blp", x + 0j, B_bar)
        h = torch.zeros_like(Bu[:, 0, :])
        hs = []
        for t in range(L):
            h = Lam_bar[None, :] * h + Bu[:, t, :]
            hs.append(h)
        hseq = torch.stack(hs, 1)
        y = 2.0 * torch.einsum("blp,dp->bld", hseq, Cmat).real + x * Dskip[None, None, :]
        return y

    def _B_ref(x, Lambda_re, Lambda_im, B_re, B_im, C_re, C_im, log_dt, Dskip):
        Bsz, L, H = x.shape
        Lam = Lambda_re + 1j * Lambda_im
        Bmat = B_re + 1j * B_im
        Cmat = C_re + 1j * C_im
        dt = torch.exp(log_dt)
        Lam_bar = torch.exp(dt * Lam)
        B_bar = ((Lam_bar - 1.0) / Lam)[:, None] * Bmat
        Bu = torch.einsum("bld,pd->blp", x + 0j, B_bar)
        h = torch.zeros_like(Bu[:, 0, :])
        hs = []
        for t in range(L):
            h = Lam_bar[None, :] * h + Bu[:, t, :]
            hs.append(h)
        hseq = torch.stack(hs, 1)
        y = 2.0 * torch.einsum("blp,dp->bld", hseq, Cmat).real + x * Dskip[None, None, :]
        return y

    a = _A_ref(A_x, A_Lambda_re, A_Lambda_im, A_B_re, A_B_im, A_C_re, A_C_im, A_log_dt, A_Dskip)
    b = _B_ref(B_x, B_Lambda_re, B_Lambda_im, B_B_re, B_B_im, B_C_re, B_C_im, B_log_dt, B_Dskip)
    return torch.concatenate([a, b], axis=-1)
```

```python
import re

_REG = re.compile(r'\b([vas])(\d+)\b|\b([vas])\[(\d+):(\d+)\]|\b(vcc|exec|m0|scc)\b')

def regs_of(op):
    out = []
    for m in _REG.finditer(op):
        if m.group(1):
            out.append(m.group(1) + m.group(2))
        elif m.group(3):
            out += [m.group(3) + str(k) for k in range(int(m.group(4)), int(m.group(5)) + 1)]
        else:
            out.append(m.group(6))
    return out

def split_ops(s):
    ops, depth, cur = [], 0, ""
    for ch in s:
        if ch in "[(":
            depth += 1
        elif ch in "])":
            depth -= 1
        if ch == "," and depth == 0:
            ops.append(cur.strip()); cur = ""
        else:
            cur += ch
    if cur.strip():
        ops.append(cur.strip())
    return ops

TRANS = ("v_exp_f32", "v_log_f32", "v_rcp_f32", "v_rsq_f32", "v_sqrt_f32", "v_sin_f32", "v_cos_f32")
NOWRITE_S = ("s_cmp", "s_waitcnt", "s_barrier", "s_nop", "s_branch", "s_cbranch", "s_endpgm", "s_sleep", "s_setprio", "s_bitcmp")

class Ins:
    __slots__ = ("text", "mn", "kind", "wr", "rd", "tag", "srcc", "wide_data")
    def __init__(self, text, tag=None):
        self.text = text
        self.tag = tag
        t = text.split(";")[0].strip()
        parts = t.split(None, 1)
        mn = parts[0]
        self.mn = mn
        rest = parts[1] if len(parts) > 1 else ""
        ops = split_ops(rest)
        mods = ""
        if ops:
            last = ops[-1].split(None, 1)
            if len(last) > 1 and not ops[-1].startswith(("hwreg", "vmcnt", "lgkmcnt")):
                ops[-1] = last[0]; mods = last[1]
        wr, rd = [], []
        self.srcc = []
        self.wide_data = []
        if mn.startswith("v_mfma"):
            kind = "mfma"
            wr = regs_of(ops[0]); rd = regs_of(ops[1]) + regs_of(ops[2]) + regs_of(ops[3]); self.srcc = regs_of(ops[3])
        elif mn.startswith("v_permlane"):
            kind = "perm"
            wr = regs_of(ops[0]) + regs_of(ops[1]); rd = list(wr)
        elif mn.startswith("v_"):
            kind = "trans" if mn.replace("_e32", "").replace("_e64", "") in TRANS else "valu"
            if "_dpp" in mn or "row_" in mods or "quad_perm" in mods:
                kind = "dpp"
            wr = regs_of(ops[0])
            for o in ops[1:]:
                rd += regs_of(o)
            if mn.startswith(("v_fmac", "v_pk_fmac", "v_writelane")) or "d16" in mn:
                rd += wr
            if mn.startswith(("v_add_co", "v_addc", "v_sub_co", "v_subb")):
                wr += regs_of(ops[1])
            if mn.startswith("v_readfirstlane") or mn.startswith("v_readlane"):
                kind = "rdlane"
        elif mn.startswith("ds_"):
            if mn.startswith(("ds_read", "ds_bpermute", "ds_permute", "ds_swizzle")):
                kind = "dsr"; wr = regs_of(ops[0])
                for o in ops[1:]: rd += regs_of(o)
                if "d16" in mn: rd += wr
            else:
                kind = "dsw"
                for o in ops: rd += regs_of(o)
        elif mn.startswith(("buffer_", "global_")):
            islds = bool(re.search(r'\blds\b', mods))
            if mn in ("buffer_wbl2", "buffer_inv"):
                kind = "vst"
            elif "load" in mn and not islds:
                kind = "vld"; wr = regs_of(ops[0])
                for o in ops[1:]: rd += regs_of(o)
                if "d16" in mn: rd += wr
            elif islds:
                kind = "dma"
                for o in ops: rd += regs_of(o)
                rd.append("m0")
            else:
                kind = "vst"
                for o in ops: rd += regs_of(o)
                if "atomic" in mn and re.search(r'\bsc0\b', mods):
                    kind = "vld"; wr = regs_of(ops[0])
                if "x3" in mn or "x4" in mn:
                    self.wide_data = regs_of(ops[0] if mn.startswith("buffer_") else ops[1])
        elif mn.startswith(("s_load", "s_memtime", "s_memrealtime", "s_buffer_load")):
            kind = "smem"; wr = regs_of(ops[0])
            for o in ops[1:]: rd += regs_of(o)
        elif mn.startswith("s_"):
            kind = "salu"
            if mn.startswith(NOWRITE_S):
                for o in ops: rd += regs_of(o)
            else:
                wr = regs_of(ops[0])
                for o in ops[1:]: rd += regs_of(o)
                if "saveexec" in mn: wr.append("exec")
        else:
            raise ValueError("unknown instr " + text)
        self.kind = kind; self.wr = set(wr); self.rd = set(rd)

VALUK = ("valu", "trans", "dpp", "perm", "rdlane")

class Prog:
    def __init__(self):
        self.items = []
    def e(self, text, tag=None):
        for line in text.strip().split("\n"):
            line = line.strip()
            if line:
                self.items.append(Ins(line, tag))
    def label(self, n): self.items.append(("label", n))
    def raw(self, t): self.items.append(("raw", t))
    def wait_vm(self, tag): self.items.append(("wvm", tag))
    def wait_ds(self): self.items.append(("wds",))
    def add(self, lst):
        for x in lst:
            if isinstance(x, str): self.e(x)
            else: self.items.append(x)

    def finalize(self):
        out = []
        vm = []
        ds = []
        hist = []
        def emit(ins, states=1):
            out.append("    " + ins.text)
            hist.append((ins, states))
            if len(hist) > 40: hist.pop(0)
        def emit_wait(vmn=None, lg=None):
            t = "s_waitcnt"
            if vmn is not None: t += f" vmcnt({min(vmn,63)})"
            if lg is not None: t += f" lgkmcnt({min(lg,15)})"
            emit(Ins(t))
        def need_states(ins):
            need = 0
            dist = 0
            for p, st in reversed(hist):
                req = 0
                pw = p.wr
                if p.kind in VALUK:
                    vw = {r for r in pw if r[0] in "va" and r not in ("vcc",)}
                    sw = {r for r in pw if r[0] == "s" or r == "vcc"}
                    if ins.kind == "mfma" and vw & ins.rd: req = max(req, 2)
                    if ins.kind in ("dpp", "perm") and vw & ins.rd: req = max(req, 2)
                    if ins.kind == "rdlane" and vw & ins.rd: req = max(req, 1)
                    if p.kind == "trans" and ins.kind in VALUK + ("mfma",) and ins.kind != "trans" and vw & ins.rd: req = max(req, 1)
                    if p.kind == "trans" and ins.kind in ("vst", "dsw", "vld", "dma", "dsr") and vw & ins.rd: req = max(req, 1)
                    if sw & ins.rd:
                        if ins.kind in ("vld", "vst", "dma"): req = max(req, 5)
                        elif ins.kind == "rdlane": req = max(req, 4)
                        elif ins.kind in VALUK: req = max(req, 2)
                        elif ins.kind in ("salu", "smem"): req = max(req, 1)
                    if "exec" in pw:
                        if ins.kind == "dpp": req = max(req, 5)
                        if ins.kind in ("mfma", "perm", "rdlane"): req = max(req, 4)
                if p.kind == "mfma":
                    big = "32x32" in p.mn
                    if ins.kind == "mfma":
                        c = set(ins.srcc)
                        ab = ins.rd - c
                        if pw & ab: req = max(req, 12 if big else 8)
                        if pw & c and pw != c: req = max(req, 10 if big else 6)
                        if pw & ins.wr and pw != c: req = max(req, 10 if big else 6)
                    elif ins.kind not in ("salu", "smem"):
                        if pw & (ins.rd | ins.wr): req = max(req, 12 if big else 8)
                        if ins.kind in VALUK and set(p.srcc) & ins.wr: req = max(req, 7 if big else 3)
                if p.kind == "salu" and "m0" in pw and ins.kind == "dma": req = max(req, 1)
                if p.wide_data and set(p.wide_data) & ins.wr: req = max(req, 2)
                need = max(need, req - dist)
                dist += st
                if dist > 20: break
            return need
        for it in self.items:
            if isinstance(it, tuple):
                if it[0] == "label":
                    out.append(it[1] + ":")
                elif it[0] == "raw":
                    out.append(it[1])
                elif it[0] == "wvm":
                    tags = it[1] if isinstance(it[1], (list, tuple, set)) else [it[1]]
                    idx = [k for k, o in enumerate(vm) if o.tag in tags]
                    if idx:
                        n = len(vm) - 1 - idx[-1]
                        emit_wait(vmn=n)
                        n = min(n, 63)
                        vm = vm[len(vm) - n:] if n else []
                elif it[0] == "wds":
                    if ds:
                        emit_wait(lg=0); ds = []
                elif it[0] == "reset":
                    vm = []; ds = []
                continue
            ins = it
            if ins.mn == "s_waitcnt":
                m = re.search(r'vmcnt\((\d+)\)', ins.text)
                if m:
                    n = int(m.group(1)); vm = vm[len(vm) - n:] if n and n < len(vm) else ([] if n == 0 else vm)
                m = re.search(r'lgkmcnt\((\d+)\)', ins.text)
                if m:
                    n = int(m.group(1))
                    if n == 0: ds = []
                    elif not any(o.kind == "smem" for o in ds) and n < len(ds): ds = ds[len(ds) - n:]
                emit(ins); continue
            touched = ins.rd | ins.wr
            vmn = lg = None
            idx = [k for k, o in enumerate(vm) if o.wr & touched]
            if idx:
                vmn = min(len(vm) - 1 - idx[-1], 63)
                vm = vm[len(vm) - vmn:] if vmn else []
            idx = [k for k, o in enumerate(ds) if o.wr & touched]
            if idx:
                if any(o.kind == "smem" for o in ds): lg = 0
                else: lg = min(len(ds) - 1 - idx[-1], 15)
                ds = ds[len(ds) - lg:] if lg else []
            if vmn is not None or lg is not None:
                emit_wait(vmn, lg)
            n = need_states(ins)
            while n > 0:
                k = min(n, 16)
                emit(Ins(f"s_nop {k-1}"), k); n -= k
            st = 1
            if ins.mn == "s_nop": st = int(ins.text.split()[1]) + 1
            emit(ins, st)
            if ins.kind in ("vld", "vst", "dma"): vm.append(ins)
            if ins.kind in ("dsr", "dsw", "smem"): ds.append(ins)
        return "\n".join(out)

def interleave(main, side, start=0, every=1, per=1):
    out = []
    side = list(side)
    for k, m in enumerate(main):
        out.append(m)
        if k >= start and (k - start) % every == 0:
            for _ in range(per):
                if side:
                    s = side.pop(0)
                    out += s if isinstance(s, list) else [s]
    for s in side:
        out += s if isinstance(s, list) else [s]
    return out
```

```python
import sys, argparse
from asmlib import Prog, Ins, interleave

ap = argparse.ArgumentParser()
ap.add_argument("--prof", action="store_true")
ap.add_argument("-o", default="concat_heads__ssm_conv_s5__ssm_conv_s5__prompt.s")
args = ap.parse_args()
PROF = args.prof
NAME = "concat_heads__ssm_conv_s5__ssm_conv_s5__prompt_kernel"

ROWB = 1152
XBYTES = 2048 * ROWB
WBYTES = 576 * ROWB
OUTB = 2048 * 4608
WS_FLAG = 0x40000
WS_PROF = 0x50000
WS_H = 0x100000
WS_SIZE = 0xA00000
HHALF = 147456
SPIN_MAX = 200000

L_X, L_W, L_M = 0, 49152, 98304
L_XS = 104448
L_SCR = 124928
L_C8 = 126976
LDS_TOTAL = 163840

sSRD_X, sSRD_BR, sSRD_BI, sSRD_MX, sSRD_CR, sSRD_CI, sSRD_WS, sSRD_OUT, sSRD_DBG, sSRD_AG, sSRD_C8 = 4, 8, 12, 16, 20, 24, 28, 32, 36, 40, 44
sHD, sC, sJ, sW, sHF, sE, sKB, sT0, sT1, sT2 = 48, 49, 50, 51, 52, 53, 54, 55, 56, 57
sM0X, sM0W, sM0M, sM0C, sM08, sHSRC = 58, 59, 60, 61, 62, 63
sPTR = 64
sSO = 64
sXSO = 72
sMSK = 74
sCNT = 76
sK1, sK2, sK3 = 77, 78, 79
sSTAMP = 80
def srd(b): return f"s[{b}:{b+3}]"

vL, vQ, vI = 1, 2, 3
vX = [4, 5, 6, 7]; vW = [8, 9, 10, 11]; vM = 12
vRA = [13, 14]; vRB = [15, 16]; vRM = [17, 18]; vRAM = [19, 20]
vPUB = 21
vG1 = [22, 23, 24, 25]; vG2 = [26, 27, 28, 29]
vHS, vHSM = 30, 31
UR = lambda m: 32 + 4 * m
UI = lambda m: 64 + 4 * m
UM = lambda m: 96 + 4 * m
cL1 = 104; cC1 = 106; cPAr = 108; cPAi = 110; cR4 = 112; cRQ = 114; cGMr = 116; cGMi = 118; cMU = 120; cNU = 122
cAQ = 124; cBQ = 126
cLM = 128; cCM = 130; cPMa = 132; cPMb = 134; cMR4 = 136; cMRQ = 138; cMX = 140; cMY = 142
cMMU = 144; cMNU = 146; cMKA = 148; cMKW = 150; cMAQ = 152; cSGN = 154
cLOCR = 156; cLOCI = 158
ACC2 = lambda s, t: 160 + 8 * s + 4 * t
ACC8 = 192
CFV = 196
vT = 228
vC = [4, 5, 6, 7]
vRC = [15, 16]
vR8 = [17, 18]
vRH = [8, 9, 10, 11]
vO = [19, 20]; vO8 = 12
C8V = lambda ks: 32 + 4 * ks
HF = lambda b, s: 128 + 16 * b + 4 * s
C8B = lambda b: 228 + 4 * b
def CF(ks, t):
    f = 2 * ks + t
    return f"a[{4*f}:{4*f+3}]" if f < 64 else f"v[{CFV+4*(f-64)}:{CFV+4*(f-64)+3}]"
FA = lambda b, m: 52 * b + 4 * m
FAM = lambda b, m: 52 * b + 32 + 4 * m
FB = lambda b, n: 52 * b + 40 + 4 * n
def v4(r): return f"v[{r}:{r+3}]"
def a4(r): return f"a[{r}:{r+3}]"
def v2(r): return f"v[{r}:{r+1}]"

P = Prog()
E = P.e
nstamp = [0]
def stamp():
    if PROF:
        k = nstamp[0]; nstamp[0] += 1
        assert sSTAMP + 2 * k + 1 <= 101
        E(f"s_memtime s[{sSTAMP+2*k}:{sSTAMP+2*k+1}]")

BCLO = "op_sel:[0,0,0] op_sel_hi:[0,1,1]"
def pkfma(d, s0, s1, s2, sel0="n", sel1="n", neg0=None):
    m = {"n": (0, 1), "l": (0, 0), "h": (1, 1), "s": (1, 0)}
    t = f"v_pk_fma_f32 {v2(d)}, {v2(s0)}, {v2(s1)}, {v2(s2)} op_sel:[{m[sel0][0]},{m[sel1][0]},0] op_sel_hi:[{m[sel0][1]},{m[sel1][1]},1]"
    if neg0 in ("both", "lo"): t += " neg_lo:[1,0,0]"
    if neg0 in ("both", "hi"): t += " neg_hi:[1,0,0]"
    return t
def pkmul(d, s0, s1, sel0="n", sel1="n"):
    m = {"n": (0, 1), "l": (0, 0), "h": (1, 1), "s": (1, 0)}
    return f"v_pk_mul_f32 {v2(d)}, {v2(s0)}, {v2(s1)} op_sel:[{m[sel0][0]},{m[sel1][0]}] op_sel_hi:[{m[sel0][1]},{m[sel1][1]}]"
DPP8 = "row_ror:8 row_mask:0xf bank_mask:0xf"

E(f"""
s_cmp_ge_u32 s2, 256
s_cbranch_scc1 L_end
s_and_b32 s3, s2, 7
s_lshr_b32 s{sT0}, s2, 3
s_and_b32 s{sHD}, s3, 1
s_mul_i32 s{sT1}, s{sHD}, 72
s_load_dwordx16 s[64:79], s[0:1], s{sT1}
s_load_dwordx2 s[80:81], s[0:1], s{sT1} offset:64
s_load_dwordx4 s[84:87], s[0:1], 144
s_load_dwordx2 s[88:89], s[0:1], 160
s_getpc_b64 s[90:91]
""")
P.label("L_pc")
E(f"""
s_lshr_b32 s3, s3, 1
s_lshl_b32 s3, s3, 2
s_lshr_b32 s{sC}, s{sT0}, 3
s_add_u32 s{sC}, s{sC}, s3
s_and_b32 s{sJ}, s{sT0}, 7
s_lshr_b32 s{sHF}, s{sJ}, 2
s_and_b32 s{sE}, s{sJ}, 3
v_lshrrev_b32 v{vT}, 6, v0
v_and_b32 v{vL}, 63, v0
v_readfirstlane_b32 s{sW}, v{vT}
v_lshrrev_b32 v{vQ}, 4, v{vL}
v_and_b32 v{vI}, 15, v{vL}
""")
if PROF:
    E("s_memtime s[92:93]")
    E("s_memrealtime s[94:95]")
E(f"v_lshlrev_b32 v{vT+1}, 7, v0")
E(f"v_min_u32 v{vT+1}, CODE_LAST, v{vT+1}")
E(f"global_load_dword v{vT+27}, v{vT+1}, s[90:91]", tag="cpf")
a_, pos_, sw_, f_ = vT + 2, vT + 3, vT + 4, vT + 5
E(f"""
v_lshrrev_b32 v{a_}, 3, v{vL}
v_and_b32 v{pos_}, 7, v{vL}
v_lshrrev_b32 v{vT+6}, 1, v{a_}
v_xor_b32 v{sw_}, v{pos_}, v{vT+6}
v_lshlrev_b32 v{sw_}, 4, v{sw_}
v_lshrrev_b32 v{f_}, 2, v{a_}
v_lshlrev_b32 v{f_}, 5, v{f_}
v_and_b32 v{vT+7}, 1, v{a_}
v_lshl_add_u32 v{f_}, v{vT+7}, 4, v{f_}
v_and_b32 v{vT+7}, 1, v{vT+6}
v_add_u32 v{f_}, v{f_}, v{vT+7}
v_mul_u32_u24 v{f_}, {ROWB}, v{f_}
v_mul_u32_u24 v{vT+8}, {ROWB}, v{a_}
s_lshl_b32 s{sT0}, s{sC}, 7
s_lshl_b32 s{sT1}, s{sW}, 2
s_add_u32 s{sT0}, s{sT0}, s{sT1}
s_mul_i32 s{sT0}, s{sT0}, {ROWB}
s_add_u32 s{sT0}, s{sT0}, 4096
v_add3_u32 v{vX[0]}, v{f_}, v{sw_}, s{sT0}
v_xor_b32 v{vT+9}, 64, v{sw_}
s_add_u32 s{sT0}, s{sT0}, {64*ROWB-1024}
v_add3_u32 v{vX[1]}, v{f_}, v{vT+9}, s{sT0}
v_add_u32 v{vX[2]}, {2*ROWB-2048}, v{vX[0]}
v_add_u32 v{vX[3]}, {2*ROWB-2048}, v{vX[1]}
s_mul_i32 s{sT0}, s{sJ}, 72
s_lshl_b32 s{sT1}, s{sW}, 4
s_add_u32 s{sT1}, s{sT0}, s{sT1}
s_mul_i32 s{sT2}, s{sT1}, {ROWB}
s_add_u32 s{sT2}, s{sT2}, 4096
v_add3_u32 v{vW[0]}, v{vT+8}, v{sw_}, s{sT2}
s_add_u32 s{sT2}, s{sT2}, {8*ROWB-1024}
v_add3_u32 v{vW[1]}, v{vT+8}, v{vT+9}, s{sT2}
v_subrev_u32 v{vW[2]}, 2048, v{vW[0]}
v_subrev_u32 v{vW[3]}, 2048, v{vW[1]}
""")
E(f"""
v_add_u32 v{vT+10}, s{sT1}, v{vI}
v_lshlrev_b32 v{vT+10}, 1, v{vT+10}
v_and_b32 v{vT+11}, 7, v{vI}
v_add_u32 v{vT+11}, s{sT0}, v{vT+11}
v_lshlrev_b32 v{vT+11}, 1, v{vT+11}
s_and_b32 s{sT1}, s{sW}, 1
s_lshl_b32 s{sT1}, s{sT1}, 2
s_add_u32 s{sT0}, s{sT0}, s{sT1}
s_add_u32 s{sT0}, s{sT0}, 64
s_mul_i32 s{sT0}, s{sT0}, {ROWB}
s_add_u32 s{sT0}, s{sT0}, 4096
s_lshl_b32 s{sT1}, s{sW}, 1
v_add_u32 v{vT+12}, s{sT1}, v{vT+6}
v_xor_b32 v{vT+12}, v{pos_}, v{vT+12}
v_lshlrev_b32 v{vT+12}, 4, v{vT+12}
v_add3_u32 v{vM}, v{vT+8}, v{vT+12}, s{sT0}
s_lshl_b32 s{sM0X}, s{sW}, 12
s_add_u32 s{sM0W}, s{sM0X}, {L_W}
s_lshl_b32 s{sM0M}, s{sW}, 9
s_add_u32 s{sM0M}, s{sM0M}, {L_M}
s_mov_b32 s{sKB}, 0
s_waitcnt lgkmcnt(0)
""")
def mk_srd(d, p, size, shift=0):
    if shift:
        E(f"s_sub_u32 s{d}, s{p}, {shift}\ns_subb_u32 s{d+1}, s{p+1}, 0")
    else:
        E(f"s_mov_b32 s{d}, s{p}\ns_mov_b32 s{d+1}, s{p+1}")
    E(f"s_mov_b32 s{d+2}, {size+shift}\ns_mov_b32 s{d+3}, 0x20000")
mk_srd(sSRD_X, 64, XBYTES, 4096)
mk_srd(sSRD_BR, 70, WBYTES, 4096)
mk_srd(sSRD_BI, 72, WBYTES, 4096)
E(f"""
s_cmp_lt_u32 s{sW}, 2
s_cselect_b32 s{sSRD_MX}, s{sSRD_BR}, s{sSRD_BI}
s_cselect_b32 s{sSRD_MX+1}, s{sSRD_BR+1}, s{sSRD_BI+1}
s_mov_b32 s{sSRD_MX+2}, {WBYTES+4096}
s_mov_b32 s{sSRD_MX+3}, 0x20000
""")
pL = 140
pD = 156
E(f"global_load_ushort v{pL+0}, v{vT+10}, s[66:67]")
E(f"global_load_ushort v{pL+1}, v{vT+10}, s[68:69]")
E(f"global_load_ushort v{pL+2}, v{vT+10}, s[78:79]")
E(f"global_load_ushort v{pL+3}, v{vT+11}, s[66:67] offset:128")
E(f"global_load_ushort v{pL+4}, v{vT+11}, s[68:69] offset:128")
E(f"global_load_ushort v{pL+5}, v{vT+11}, s[78:79] offset:128")

def dma_stage(slot, tag):
    g = []
    g.append([Ins(f"s_add_u32 m0, s{sM0X}, {slot*16384}"), Ins(f"buffer_load_dwordx4 v{vX[0]}, {srd(sSRD_X)}, s{sKB} offen lds", tag)])
    for k in (1, 2, 3):
        g.append([Ins(f"buffer_load_dwordx4 v{vX[k]}, {srd(sSRD_X)}, s{sKB} offen offset:{1024*k} lds", tag)])
    g.append([Ins(f"s_add_u32 m0, s{sM0W}, {slot*16384}"), Ins(f"buffer_load_dwordx4 v{vW[0]}, {srd(sSRD_BR)}, s{sKB} offen lds", tag)])
    g.append([Ins(f"buffer_load_dwordx4 v{vW[1]}, {srd(sSRD_BR)}, s{sKB} offen offset:1024 lds", tag)])
    g.append([Ins(f"buffer_load_dwordx4 v{vW[2]}, {srd(sSRD_BI)}, s{sKB} offen offset:2048 lds", tag)])
    g.append([Ins(f"buffer_load_dwordx4 v{vW[3]}, {srd(sSRD_BI)}, s{sKB} offen offset:3072 lds", tag)])
    g.append([Ins(f"s_add_u32 m0, s{sM0M}, {slot*2048}"), Ins("s_mov_b32 exec_hi, 0"),
              Ins(f"buffer_load_dwordx4 v{vM}, {srd(sSRD_MX)}, s{sKB} offen lds", tag), Ins("s_mov_b32 exec_hi, -1"),
              Ins(f"s_add_u32 s{sKB}, s{sKB}, 128")])
    return g
def flat(g):
    o = []
    for x in g: o += x if isinstance(x, list) else [x]
    return o

P.add(flat(dma_stage(0, "st0")))
mk_srd(sSRD_WS, 88, WS_SIZE)
mk_srd(sSRD_DBG, 86, 256)
E(f"""
s_lshl_b32 s{sT0}, s{sHD}, 3
s_add_u32 s{sT0}, s{sT0}, s{sJ}
s_mul_i32 s{sT0}, s{sT0}, 12288
s_add_u32 s{sSRD_AG}, s88, s{sT0}
s_addc_u32 s{sSRD_AG+1}, s89, 0
s_mov_b32 s{sSRD_AG+2}, 12288
s_mov_b32 s{sSRD_AG+3}, 0x20000
s_mul_i32 s{sT1}, s{sC}, 768
s_add_u32 s{sT0}, s{sT0}, s{sT1}
s_lshl_b32 s{sT2}, s{sW}, 7
v_lshlrev_b32 v{vT+13}, 3, v{vI}
v_add_u32 v{vT+13}, s{sT2}, v{vT+13}
v_and_b32 v{vT+14}, 7, v{vI}
v_lshlrev_b32 v{vT+14}, 5, v{vT+14}
v_lshrrev_b32 v{vT+15}, 3, v{vI}
v_lshl_add_u32 v{vT+16}, v{vQ}, 2, v{vT+13}
v_add_u32 v{vPUB}, s{sT0}, v{vT+16}
s_lshl_b32 s{sT2}, s{sW}, 3
s_add_u32 s{sT2}, s{sT2}, s{sT0}
s_add_u32 s{sT2}, s{sT2}, 512
v_lshl_add_u32 v{vT+16}, v{vT+15}, 2, v{vT+14}
v_add_u32 v{vT+16}, s{sT2}, v{vT+16}
v_cmp_eq_u32 vcc, 2, v{vQ}
v_cndmask_b32 v{vPUB}, v{vPUB}, v{vT+16}, vcc
s_lshl_b32 s{sT0}, s{sHD}, 4
s_add_u32 s{sT0}, s{sT0}, s{sC}
s_mul_i32 s{sHSRC}, s{sT0}, {2*HHALF}
s_add_u32 s{sHSRC}, s{sHSRC}, {WS_H}
s_lshl_b32 s{sT0}, s{sT0}, 7
s_add_u32 s{sT0}, s{sT0}, {WS_FLAG}
s_mov_b32 s{sM08}, s{sT0}
s_lshl_b32 s{sT2}, s{sJ}, 4
s_add_u32 s{sT0}, s{sT0}, s{sT2}
s_lshl_b32 s{sT2}, s{sW}, 2
s_add_u32 s{sT0}, s{sT0}, s{sT2}
v_mov_b32 v{vT+16}, s{sT0}
v_cmp_eq_u32 vcc, 48, v{vL}
v_cndmask_b32 v{vPUB}, v{vPUB}, v{vT+16}, vcc
v_mov_b32 v{vT+16}, 0x7ffffff0
v_cmp_lt_u32 vcc, 48, v{vL}
v_cndmask_b32 v{vPUB}, v{vPUB}, v{vT+16}, vcc
v_mov_b32 v{vT+17}, -1
buffer_store_dword v{vT+17}, v{vPUB}, {srd(sSRD_WS)}, 0 offen sc1
""", tag="clr")
sFLAGB = 3
E(f"s_mov_b32 s{sFLAGB}, s{sM08}")
P.add(flat(dma_stage(1, "st1")))
P.add(flat(dma_stage(2, "st2")))
E(f"""
s_sub_u32 s{sT1}, s{sC}, 1
v_sub_u32 v{vT+16}, s{sT1}, v{vQ}
v_mul_i32_i24 v{vT+16}, 768, v{vT+16}
v_add_u32 v{vG1[0]}, v{vT+16}, v{vT+13}
v_lshl_add_u32 v{vT+17}, v{vT+15}, 4, v{vT+14}
v_add_u32 v{vT+17}, 512, v{vT+17}
v_add_u32 v{vG2[0]}, v{vT+16}, v{vT+17}
""")
for k in (1, 2, 3):
    E(f"v_subrev_u32 v{vG1[k]}, {3072*k}, v{vG1[0]}\nv_subrev_u32 v{vG2[k]}, {3072*k}, v{vG2[0]}")
E(f"""
v_lshrrev_b32 v{vT+16}, 1, v{vI}
v_xor_b32 v{vT+16}, v{vQ}, v{vT+16}
v_lshlrev_b32 v{vT+16}, 4, v{vT+16}
v_lshl_add_u32 v{vRA[0]}, v{vI}, 7, v{vT+16}
v_xor_b32 v{vRA[1]}, 64, v{vRA[0]}
v_add_u32 v{vRAM[0]}, s{sM0X}, v{vRA[0]}
v_add_u32 v{vRAM[1]}, s{sM0X}, v{vRA[1]}
v_add_u32 v{vRB[0]}, s{sM0W}, v{vRA[0]}
v_add_u32 v{vRB[1]}, s{sM0W}, v{vRA[1]}
v_add_u32 v{vRM[0]}, {L_M}, v{vRA[0]}
v_add_u32 v{vRM[1]}, {L_M}, v{vRA[1]}
""")
E(f"""
v_and_b32 v{vT+16}, 3, v{vI}
v_lshlrev_b32 v{vT+16}, 4, v{vT+16}
v_lshrrev_b32 v{vT+17}, 1, v{vQ}
v_lshl_add_u32 v{vT+16}, v{vT+17}, 6, v{vT+16}
v_bfe_u32 v{vT+17}, v{vI}, 2, 1
v_lshl_add_u32 v{vT+16}, v{vT+17}, 8, v{vT+16}
v_and_b32 v{vT+17}, 1, v{vQ}
v_lshl_add_u32 v{vT+16}, v{vT+17}, 9, v{vT+16}
s_mul_i32 s{sT0}, s{sJ}, 9
s_lshl_b32 s{sT1}, s{sW}, 1
s_add_u32 s{sT1}, s{sT1}, s{sT0}
v_add_u32 v{vT+17}, s{sT1}, v{vT+15}
v_lshrrev_b32 v{vT+18}, 1, v{vT+17}
v_lshlrev_b32 v{vT+18}, 11, v{vT+18}
v_and_b32 v{vT+17}, 1, v{vT+17}
v_lshl_add_u32 v{vT+18}, v{vT+17}, 7, v{vT+18}
v_add3_u32 v{vHS}, v{vT+16}, v{vT+18}, s{sHSRC}
s_add_u32 s{sT0}, s{sT0}, 8
s_lshr_b32 s{sT1}, s{sT0}, 1
s_lshl_b32 s{sT1}, s{sT1}, 11
s_and_b32 s{sT0}, s{sT0}, 1
s_lshl_b32 s{sT0}, s{sT0}, 7
s_add_u32 s{sT0}, s{sT0}, s{sT1}
s_and_b32 s{sT1}, s{sW}, 1
s_lshl_b32 s{sT1}, s{sT1}, 10
s_add_u32 s{sT0}, s{sT0}, s{sT1}
s_lshr_b32 s{sT1}, s{sW}, 1
s_mul_i32 s{sT1}, s{sT1}, {HHALF}
s_add_u32 s{sT0}, s{sT0}, s{sT1}
s_add_u32 s{sT0}, s{sT0}, s{sHSRC}
v_mul_u32_u24 v{vT+17}, 73728, v{vT+15}
v_add3_u32 v{vHSM}, v{vT+16}, v{vT+17}, s{sT0}
s_mul_i32 s{sT0}, s{sHF}, {HHALF}
s_add_u32 s{sHSRC}, s{sHSRC}, s{sT0}
""")
mk_srd(sSRD_CR, 74, WBYTES, 4096)
mk_srd(sSRD_CI, 76, WBYTES, 4096)
mk_srd(sSRD_OUT, 84, OUTB)
E(f"""
s_cmp_lt_u32 s{sW}, 2
s_cselect_b32 s{sSRD_C8}, s{sSRD_CR}, s{sSRD_CI}
s_cselect_b32 s{sSRD_C8+1}, s{sSRD_CR+1}, s{sSRD_CI+1}
s_mov_b32 s{sSRD_C8+2}, {WBYTES+4096}
s_mov_b32 s{sSRD_C8+3}, 0x20000
""")
E(f"""
s_mul_i32 s{sT0}, s{sE}, 288
s_lshl_b32 s{sT1}, s{sW}, 6
v_lshlrev_b32 v{vT+16}, 1, v{vI}
v_add_u32 v{vT+16}, s{sT0}, v{vT+16}
v_add_u32 v{vT+17}, s{sT1}, v{vT+16}
global_load_ushort v{pD}, v{vT+17}, s[80:81]
global_load_ushort v{pD+1}, v{vT+17}, s[80:81] offset:32
global_load_ushort v{pD+2}, v{vT+16}, s[80:81] offset:256
""")
kSW, kSW4, kA8, kF = 250, 251, 252, 253
E(f"""
v_mov_b32 v{kSW}, v{sw_}
v_mov_b32 v{kSW4}, v{vT+9}
v_mov_b32 v{kA8}, v{vT+8}
""")
vV8, vXS0, vXS1, vXS8 = 254, 246, 247, 248
E(f"""
s_mul_i32 s{sT0}, s{sE}, 144
s_and_b32 s{sT1}, s{sW}, 1
s_lshl_b32 s{sT2}, s{sT1}, 3
s_add_u32 s{sT0}, s{sT0}, s{sT2}
s_add_u32 s{sT0}, s{sT0}, 128
s_mul_i32 s{sT0}, s{sT0}, {ROWB}
s_add_u32 s{sT0}, s{sT0}, 4096
s_lshl_b32 s{sT2}, s{sT1}, 6
v_xor_b32 v{vT+16}, s{sT2}, v{kSW}
v_add3_u32 v{vV8}, v{kA8}, v{vT+16}, s{sT0}
s_lshr_b32 s{sT2}, s{sW}, 1
s_mul_i32 s{sM08}, s{sT2}, 18432
s_lshl_b32 s{sT0}, s{sT1}, 10
s_add_u32 s{sM08}, s{sM08}, s{sT0}
s_add_u32 s{sM08}, s{sM08}, {L_C8}
""")
E(f"""
v_lshlrev_b32 v{vT+16}, 5, v{vQ}
v_bfe_u32 v{vT+17}, v{vL}, 2, 1
v_lshl_add_u32 v{vT+16}, v{vT+17}, 4, v{vT+16}
v_bfe_u32 v{vT+17}, v{vL}, 3, 1
v_add_u32 v{vT+16}, v{vT+16}, v{vT+17}
v_and_b32 v{vT+17}, 1, v{vQ}
v_xor_b32 v{vT+17}, s{sT1}, v{vT+17}
v_lshl_add_u32 v{vT+14}, v{vT+17}, 1, v{vT+16}
v_xor_b32 v{vT+17}, 1, v{vT+17}
v_lshl_add_u32 v{vT+15}, v{vT+17}, 1, v{vT+16}
v_mul_u32_u24 v{vT+14}, {ROWB}, v{vT+14}
v_mul_u32_u24 v{vT+15}, {ROWB}, v{vT+15}
v_and_b32 v{vT+16}, 3, v{vL}
v_lshlrev_b32 v{vT+16}, 4, v{vT+16}
s_mul_i32 s{sT0}, s{sC}, {128*ROWB}
s_mul_i32 s{sT2}, s{sE}, 288
s_add_u32 s{sT0}, s{sT0}, s{sT2}
s_add_u32 s{sT0}, s{sT0}, 4096
s_lshl_b32 s{sT2}, s{sW}, 6
s_add_u32 s{sT2}, s{sT2}, s{sT0}
v_add3_u32 v{vXS0}, v{vT+14}, v{vT+16}, s{sT2}
v_add3_u32 v{vXS1}, v{vT+15}, v{vT+16}, s{sT2}
v_and_b32 v{vT+16}, 16, v{vT+16}
s_add_u32 s{sT0}, s{sT0}, 256
v_add3_u32 v{vXS8}, v{vT+14}, v{vT+16}, s{sT0}
""")
E(f"""
s_lshr_b32 s{sT0}, s{sW}, 1
s_lshl_b32 s{sT1}, s{sHF}, 1
s_add_u32 s{sT2}, s{sT1}, s{sT0}
s_xor_b32 s{sT0}, s{sT0}, 1
s_add_u32 s{sT1}, s{sT1}, s{sT0}
s_mul_i32 s{sXSO}, s{sT2}, {4*ROWB}
s_mul_i32 s{sXSO+1}, s{sT1}, {4*ROWB}
s_mul_i32 s{sSO}, s{sT2}, {4*4608}
s_mul_i32 s{sSO+4}, s{sT1}, {4*4608}
""")
for sh in range(2):
    for r in (1, 2, 3):
        E(f"s_add_u32 s{sSO+4*sh+r}, s{sSO+4*sh}, {(16*(r&1)+(r>>1))*4608}")
E(f"s_mov_b32 s{sK1}, 73728\ns_mov_b32 s{sK2}, {HHALF}\ns_mov_b32 s{sK3}, {HHALF+73728}")
E(f"s_mul_i32 s{sM0C}, s{sW}, 24576")

K = []
def k(t):
    for line in t.strip().split("\n"):
        if line.strip(): K.append(line.strip())
LOG2E = "0x3fb8aa3b"; INV2PI = "0x3e22f983"
t0, t1, t2, t3, t4, t5 = [vT + n for n in range(6)]
zR = [vT + 6, vT + 8]; zA = [vT + 7, vT + 9]
fQ, fN = vT + 10, vT + 11
def power(dr, di, st, n):
    src = n if isinstance(n, str) else f"v{n}"
    k(f"""
    v_mul_f32 v{t0}, {src}, v{zR[st]}
    v_mul_f32 v{t1}, {src}, v{zA[st]}
    v_exp_f32 v{t0}, v{t0}
    v_fract_f32 v{t1}, v{t1}
    v_cos_f32 v{t2}, v{t1}
    v_sin_f32 v{t1}, v{t1}
    v_mul_f32 v{dr}, v{t0}, v{t2}
    v_mul_f32 v{di}, v{t0}, v{t1}
    """)
def cmul(dr, di, ar, ai, br, bi):
    k(f"""
    v_mul_f32 v{dr}, v{ar}, v{br}
    v_mul_f32 v{di}, v{ar}, v{bi}
    v_fma_f32 v{dr}, -v{ai}, v{bi}, v{dr}
    v_fma_f32 v{di}, v{ai}, v{br}, v{di}
    """)
def fl(x):
    import struct
    return "0x%08x" % struct.unpack("<I", struct.pack("<f", float(x)))[0]
for st, (cl, cc) in enumerate(((cL1, cC1), (cLM, cCM))):
    pr, pi, pd = pL + 3 * st, pL + 3 * st + 1, pL + 3 * st + 2
    k(f"""
    v_lshlrev_b32 v{pr}, 16, v{pr}
    v_lshlrev_b32 v{pi}, 16, v{pi}
    v_lshlrev_b32 v{pd}, 16, v{pd}
    v_mul_f32 v{pd}, {LOG2E}, v{pd}
    v_exp_f32 v{pd}, v{pd}
    v_max_f32 v{t4}, |v{pr}|, |v{pi}|
    v_cvt_pk_bf16_f32 v{pd}, v{pd}, v{pd}
    v_rcp_f32 v{t5}, v{t4}
    v_lshlrev_b32 v{pd}, 16, v{pd}
    v_mul_f32 v{zR[st]}, v{pd}, v{pr}
    v_mul_f32 v{zA[st]}, v{pd}, v{pi}
    v_mul_f32 v{zR[st]}, {LOG2E}, v{zR[st]}
    v_mul_f32 v{zA[st]}, {INV2PI}, v{zA[st]}
    v_exp_f32 v{t0}, v{zR[st]}
    v_rndne_f32 v{t1}, v{zA[st]}
    v_sub_f32 v{zA[st]}, v{zA[st]}, v{t1}
    v_cos_f32 v{t2}, v{zA[st]}
    v_sin_f32 v{t1}, v{zA[st]}
    v_mul_f32 v{cl}, v{t0}, v{t2}
    v_mul_f32 v{cl+1}, v{t0}, v{t1}
    v_mul_f32 v{pr}, v{pr}, v{t5}
    v_mul_f32 v{pi}, v{pi}, v{t5}
    v_mul_f32 v{t0}, v{pr}, v{pr}
    v_fma_f32 v{t0}, v{pi}, v{pi}, v{t0}
    v_mul_f32 v{t0}, v{t0}, v{t4}
    v_rcp_f32 v{t0}, v{t0}
    v_add_f32 v{t1}, -1.0, v{cl}
    v_mul_f32 v{t2}, v{t1}, v{pr}
    v_fma_f32 v{t2}, v{cl+1}, v{pi}, v{t2}
    v_mul_f32 v{t3}, v{cl+1}, v{pr}
    v_fma_f32 v{t3}, -v{t1}, v{pi}, v{t3}
    v_add_f32 v{t0}, v{t0}, v{t0}
    v_mul_f32 v{cc}, v{t2}, v{t0}
    v_mul_f32 v{cc+1}, v{t3}, v{t0}
    """)
k(f"""
v_cvt_f32_u32 v{fQ}, v{vQ}
v_cmp_gt_u32 vcc, 8, v{vI}
v_mov_b32 v{t0}, 1.0
v_cndmask_b32 v{cSGN}, v{t0}, -1.0, vcc
""".replace("v_cndmask_b32 v%d, v%d, -1.0, vcc" % (cSGN, t0), "v_cndmask_b32_e64 v%d, v%d, -1.0, vcc" % (cSGN, t0)))
u0, u1 = vT + 12, vT + 13
k(f"v_mul_f32 v{fN}, {fl(-32)}, v{fQ}\nv_add_f32 v{fN}, {fl(112)}, v{fN}")
power(u0, u1, 0, fN); cmul(cPAr, cPAi, u0, u1, cC1, cC1 + 1)
k(f"v_add_f32 v{fN}, {fl(-16)}, v{fN}")
power(u0, u1, 0, fN); cmul(cPAr + 1, cPAi + 1, u0, u1, cC1, cC1 + 1)
fW = vT + 14
k(f"v_cvt_f32_u32 v{fW}, s{sW}\nv_mul_f32 v{fW}, 4.0, v{fW}")
k(f"v_sub_f32 v{fN}, v{fN}, v{fW}\nv_add_f32 v{fN}, {fl(28)}, v{fN}")
power(u0, u1, 1, fN); cmul(cPMa, cPMb, u0, u1, cCM, cCM + 1)
k(f"v_add_f32 v{fN}, {fl(-16)}, v{fN}")
power(u0, u1, 1, fN); cmul(cPMa + 1, cPMb + 1, u0, u1, cCM, cCM + 1)
k(f"""
v_mul_f32 v{cPMb}, v{cSGN}, v{cPMb}
v_mul_f32 v{cPMb+1}, v{cSGN}, v{cPMb+1}
v_mul_f32 v{cLM+1}, v{cSGN}, v{cLM+1}
v_mul_f32 v{cCM+1}, v{cSGN}, v{cCM+1}
""")
power(cR4, cR4 + 1, 0, fl(512)); power(cMR4, cMR4 + 1, 1, fl(512))
k(f"v_mul_f32 v{fN}, {fl(128)}, v{fQ}")
power(cRQ, cRQ + 1, 0, fN); power(cMRQ, cMRQ + 1, 1, fN)
power(cMU, cMU + 1, 0, fl(16)); power(cNU, cNU + 1, 0, fl(32))
power(cMMU, cMMU + 1, 1, fl(16)); power(cMNU, cMNU + 1, 1, fl(32)); power(cMKA, cMKA + 1, 1, "4.0"); power(cMKW, cMKW + 1, 1, fW)
for r in (cMMU, cMNU, cMKA, cMKW):
    k(f"v_mul_f32 v{r+1}, v{cSGN}, v{r+1}")
k(f"v_mul_f32 v{fN}, {fl(32)}, v{fQ}")
power(cGMr, cGMi, 0, fN)
k(f"v_add_f32 v{fN}, {fl(16)}, v{fN}")
power(cGMr + 1, cGMi + 1, 0, fN)
k(f"v_add_f32 v{fN}, v{fN}, v{fW}")
k(f"v_cmp_gt_u32 vcc, 8, v{vI}")
for b in (1, 0):
    power(u0, u1, 1, fN)
    k(f"""
    v_cndmask_b32 v{cMX+b}, v{u1}, v{u0}, vcc
    v_cndmask_b32_e64 v{cMY+b}, v{u0}, -v{u1}, vcc
    """)
    if b: k(f"v_add_f32 v{fN}, {fl(-16)}, v{fN}")
k(f"""
v_cmp_eq_u32 vcc, 3, v{vQ}
v_cndmask_b32 v{cAQ+1}, 0, v{cNU+1}, vcc
v_cndmask_b32 v{cMAQ+1}, 0, v{cMNU+1}, vcc
v_cndmask_b32 v{cAQ}, 1.0, v{cNU}, vcc
v_cndmask_b32 v{cMAQ}, 1.0, v{cMNU}, vcc
v_cmp_lt_u32 vcc, 1, v{vQ}
v_cndmask_b32 v{cAQ}, 0, v{cAQ}, vcc
v_cndmask_b32 v{cMAQ}, 0, v{cMAQ}, vcc
v_and_b32 v{t0}, 1, v{vQ}
v_cvt_f32_u32 v{cBQ}, v{t0}
""")

def g1_reads(n):
    kc, s, b = n >> 1, n & 1, n & 1
    sl = kc % 3
    r = []
    r.append(f"ds_read_b128 {a4(FB(b,0))}, v{vRB[s]} offset:{sl*16384}")
    r.append(f"ds_read_b128 {a4(FA(b,0))}, v{vRA[s]} offset:{sl*16384}")
    r.append(f"ds_read_b128 {a4(FB(b,1))}, v{vRB[s]} offset:{sl*16384+2048}")
    for m in range(1, 8):
        r.append(f"ds_read_b128 {a4(FA(b,m))}, v{vRA[s]} offset:{sl*16384+m*2048}")
    r.append(f"ds_read_b128 {a4(FB(b,2))}, v{vRM[s]} offset:{sl*2048}")
    for m in range(2):
        r.append(f"ds_read_b128 {a4(FAM(b,m))}, v{vRAM[s]} offset:{sl*16384+m*2048}")
    return r
def g1_mfma(n):
    b = n & 1
    r = []
    def mf(acc, a, bb):
        c = "0" if n == 0 else v4(acc)
        r.append(f"v_mfma_f32_16x16x32_bf16 {v4(acc)}, {a4(a)}, {a4(bb)}, {c}")
    for m in range(8):
        mf(UR(m), FA(b, m), FB(b, 0)); mf(UI(m), FA(b, m), FB(b, 1))
    for m in range(2):
        mf(UM(m), FAM(b, m), FB(b, 2))
    return r

extra = []
for t in range(9):
    extra.append([Ins(f"s_add_u32 m0, s{sM08}, {t*2048}"), Ins(f"s_mov_b32 s{sT0}, {t*128}"),
                  Ins(f"buffer_load_dwordx4 v{vV8}, {srd(sSRD_C8)}, s{sT0} offen lds", "c8")])
xs = []
for s in range(5):
    vo = [vXS0, vXS1, vXS0, vXS1, vXS8][s]
    so = sXSO + (s >> 1 if s < 4 else 0)
    xs.append([Ins(f"s_mul_i32 s{sT0}, s{sW}, 5120"), Ins(f"s_add_u32 m0, s{sT0}, {L_XS + s*1024}"),
               Ins(f"buffer_load_dwordx4 v{vo}, {srd(sSRD_X)}, s{so} offen lds", "xs")])
extra = xs + extra

if PROF: E('s_mov_b32 s74, s92\ns_mov_b32 s75, s94')
stamp()
P.wait_vm(["st0", "clr"])
E("s_barrier")
stamp()
E(f"""
s_lshr_b32 s{sT0}, s2, 3
s_lshl_b32 s{sT1}, s{sHD}, 5
s_add_u32 s{sT0}, s{sT0}, s{sT1}
s_lshl_b32 s{sT0}, s{sT0}, 2
v_mov_b32 v{vT+16}, s{sT0}
v_mov_b32 v{vT+17}, 0x7ffffff0
v_cmp_eq_u32 vcc, 0, v0
v_cndmask_b32 v{vT+16}, v{vT+17}, v{vT+16}, vcc
v_mov_b32 v{vT+17}, 1
buffer_atomic_add v{vT+17}, v{vT+16}, {srd(sSRD_DBG)}, 0 offen sc1
""", tag="cnt")
P.add(g1_reads(0))
Kq = list(K)
pend_dma = []
for n in range(18):
    kc = n >> 1
    side = []
    if n & 1:
        P.wait_ds()
        if kc + 1 <= 8:
            P.wait_vm(f"st{kc+1}")
            E("s_barrier")
        if kc + 3 <= 8:
            pend_dma = dma_stage(kc % 3, f"st{kc+3}")
        elif kc + 3 == 9:
            pend_dma = extra[:7]
        elif kc + 3 == 10:
            pend_dma = extra[7:]
    rd = g1_reads(n + 1) if n + 1 < 18 else []
    mf = g1_mfma(n)
    body = []
    nd = (len(pend_dma) + 1) // 2 if n & 1 else len(pend_dma)
    dm = pend_dma[:nd]; pend_dma = pend_dma[nd:]
    for gi, m in enumerate(mf):
        body.append(m)
        if gi < len(rd): body.append(rd[gi])
        if gi % 4 == 1 and dm: body += dm.pop(0)
        nk = 1 if gi < len(rd) else 2
        for _ in range(nk):
            if Kq and n >= 1: body.append(Kq.pop(0))
    for d in dm: body += d
    P.add(body)
P.add(Kq)
stamp()

def U(s): return (UR(s >> 1) + 2 * (s & 1), UI(s >> 1) + 2 * (s & 1))
def UMs(s): return UM(s >> 1) + 2 * (s & 1)
eA, eB, eC, eD = vT, vT + 2, vT + 4, vT + 6
mE, mT = vT + 8, vT + 10
p1 = []
er, ei = U(0)
ta, tb = eA, eB
for s in range(1, 16):
    ur, ui = U(s)
    p1 += [pkfma(ta, cL1, er, ur, "l"), pkfma(tb, cL1, ei, ui, "l"), pkfma(tb, cL1, er, tb, "h"), pkfma(ta, cL1, ei, ta, "h", neg0="both")]
    er, ei = ta, tb
    ta, tb = (eC, eD) if ta == eA else (eA, eB)
ER, EI = er, ei
pm = []
me = UMs(0)
mt = mE
for s in range(1, 4):
    pm += [pkfma(mt, cLM, me, UMs(s), "l"), f"v_fmac_f32_dpp v{mt}, v{me}, v{cLM+1} {DPP8}", f"v_fmac_f32_dpp v{mt+1}, v{me+1}, v{cLM+1} {DPP8}"]
    me = mt
    mt = mT if mt == mE else mE
ME = me
gM, gM2 = vT + 12, vT + 13
pm += [f"v_mul_f32 v{gM}, v{cPMa}, v{ME}", f"v_fmac_f32_dpp v{gM}, v{ME}, v{cPMb} {DPP8}",
       f"v_fmac_f32 v{gM}, v{cPMa+1}, v{ME+1}", f"v_fmac_f32_dpp v{gM}, v{ME+1}, v{cPMb+1} {DPP8}",
       f"v_mov_b32 v{gM2}, v{gM}", "s_nop 0", "s_nop 0", f"v_permlane16_swap_b32 v{gM}, v{gM2}", f"v_add_f32 v{gM}, v{gM}, v{gM2}"]
P.add(interleave(p1, pm, start=2, every=3))
GR, GI = ta, tb
P.add([pkmul(GR, cPAr, ER), pkmul(GI, cPAr, EI), pkfma(GR, cPAi, EI, GR, neg0="both"), pkfma(GI, cPAi, ER, GI)])
E(f"""
v_add_f32 v{GR}, v{GR}, v{GR+1}
v_add_f32 v{GI}, v{GI}, v{GI+1}
v_permlane16_swap_b32 v{GR}, v{GI}
v_add_f32 v{GR}, v{GR}, v{GI}
v_permlane32_swap_b32 v{GR}, v{gM}
v_add_f32 v{GR}, v{GR}, v{gM}
v_min_u32 v{GR}, -2, v{GR}
s_mov_b32 exec_hi, 0xffff
""")
E(f"buffer_store_dword v{GR}, v{vPUB}, {srd(sSRD_WS)}, 0 offen sc1", tag="pub")
E("s_mov_b32 exec_hi, -1")
stamp()

cchk = vT + 26
E(f"""
v_and_b32 v{cchk}, 31, v{vL}
v_lshlrev_b32 v{cchk}, 2, v{cchk}
s_lshl_b32 s{sT0}, s{sHD}, 7
v_add_u32 v{vT+25}, s{sT0}, v{cchk}
""")
mP = vT + 14
scr = vT + 16
E(pkmul(mP, cCM, ME, "l"))
E(f"""
v_fmac_f32_dpp v{mP}, v{ME}, v{cCM+1} {DPP8}
v_fmac_f32_dpp v{mP+1}, v{ME+1}, v{cCM+1} {DPP8}
v_lshlrev_b32 v{scr}, 3, v0
v_add_u32 v{scr}, {L_SCR}, v{scr}
ds_write_b64 v{scr}, {v2(mP)}
""")
P.wait_vm(["c8", "xs"])
P.wait_ds()
E("s_barrier")
E(f"""
s_mul_i32 s{sT0}, s{sE}, 144
s_lshl_b32 s{sT1}, s{sW}, 5
s_add_u32 s{sT0}, s{sT0}, s{sT1}
s_mul_i32 s{sT0}, s{sT0}, {ROWB}
s_add_u32 s{sT0}, s{sT0}, 4096
v_add3_u32 v{vC[0]}, v{kA8}, v{kSW}, s{sT0}
s_add_u32 s{sT0}, s{sT0}, {8*ROWB-1024}
v_add3_u32 v{vC[1]}, v{kA8}, v{kSW4}, s{sT0}
v_add_u32 v{vC[2]}, {16*ROWB-2048}, v{vC[0]}
v_add_u32 v{vC[3]}, {16*ROWB-2048}, v{vC[1]}
v_add_u32 v{vRC[0]}, s{sM0C}, v{vRA[0]}
v_add_u32 v{vRC[1]}, s{sM0C}, v{vRA[1]}
v_add_u32 v{vR8[0]}, {L_C8}, v{vRA[0]}
v_add_u32 v{vR8[1]}, {L_C8}, v{vRA[1]}
""")
def c_dma(pc):
    sr = sSRD_CR if pc < 9 else sSRD_CI
    g = [[Ins(f"s_add_u32 m0, s{sM0C}, {(pc%6)*4096}"), Ins(f"s_mov_b32 s{sKB}, {(pc%9)*128}"),
          Ins(f"buffer_load_dwordx4 v{vC[0]}, {srd(sr)}, s{sKB} offen lds", f"c{pc}_")]]
    for kk in (1, 2, 3):
        g.append([Ins(f"buffer_load_dwordx4 v{vC[kk]}, {srd(sr)}, s{sKB} offen offset:{1024*kk} lds", f"c{pc}_")])
    return g
def c_read(pc):
    r = [("wvm", f"c{pc}_")]
    for s in range(2):
        for t in range(2):
            r.append(f"ds_read_b128 {CF(2*pc+s, t)}, v{vRC[s]} offset:{(pc%6)*4096+t*2048}")
    return r
E(f"buffer_load_dword v{cchk}, v{vT+25}, {srd(sSRD_DBG)}, 0 offen sc1", tag="cchk")
for pc in range(6): P.add(flat(c_dma(pc)))

e0, e1, e2, e3 = vT + 16, vT + 18, vT + 20, vT + 22
rdA = vT + 24
E(f"""
v_lshlrev_b32 v{rdA}, 3, v{vL}
v_add_u32 v{rdA}, {L_SCR}, v{rdA}
ds_read_b64 {v2(e0)}, v{rdA}
ds_read_b64 {v2(e1)}, v{rdA} offset:512
ds_read_b64 {v2(e2)}, v{rdA} offset:1024
ds_read_b64 {v2(e3)}, v{rdA} offset:1536
""")
def mx_axpy(dst, cst, x):
    return [pkfma(dst, cst, x, dst, "l"), f"v_fmac_f32_dpp v{dst}, v{x}, v{cst+1} {DPP8}", f"v_fmac_f32_dpp v{dst+1}, v{x+1}, v{cst+1} {DPP8}"]
def mx_axpy1(dst, cst, x):
    return [f"v_fmac_f32 v{dst}, v{cst}, v{x}", f"v_fmac_f32_dpp v{dst}, v{x}, v{cst+1} {DPP8}"]
P.add([pkmul(GR, cC1, ER, "l"), pkmul(GI, cC1, EI, "l"), pkfma(GR, cC1, EI, GR, "h", neg0="both"), pkfma(GI, cC1, ER, GI, "h")])
Fr, Fi, Yr, Yi = ER, EI, ER + 1, EI + 1
E(f"""
v_fma_f32 v{Fr}, v{cMU}, v{GR}, v{GR+1}
v_fma_f32 v{Fi}, v{cMU}, v{GI}, v{GI+1}
v_fma_f32 v{Fr}, -v{cMU+1}, v{GI}, v{Fr}
v_fma_f32 v{Fi}, v{cMU+1}, v{GR}, v{Fi}
v_mov_b32 v{Yr}, v{Fr}
v_mov_b32 v{Yi}, v{Fi}
v_permlane16_swap_b32 v{Fr}, v{Yr}
v_permlane16_swap_b32 v{Fi}, v{Yi}
v_fma_f32 v{Yr}, v{cNU}, v{Fr}, v{Yr}
v_fma_f32 v{Yi}, v{cNU}, v{Fi}, v{Yi}
v_fma_f32 v{Yr}, -v{cNU+1}, v{Fi}, v{Yr}
v_fma_f32 v{Yi}, v{cNU+1}, v{Fr}, v{Yi}
v_mov_b32 v{GR+1}, v{Yr}
v_mov_b32 v{GI+1}, v{Yi}
v_permlane32_swap_b32 v{Yr}, v{GR+1}
v_permlane32_swap_b32 v{Yi}, v{GI+1}
""")
BD = [CFV, CFV + 4, CFV + 8]
XF = [CFV + 12, CFV + 16, CFV + 20, CFV + 24, CFV + 28]
kq, ksh = gM, gM2
E(f"""
v_lshrrev_b32 v{kq}, 1, v{vI}
v_lshlrev_b32 v{ksh}, 2, v{vQ}
v_sub_u32 v{kq}, v{kq}, v{ksh}
v_and_b32 v{ksh}, 1, v{vI}
v_lshlrev_b32 v{ksh}, 4, v{ksh}
v_lshlrev_b32 v{pD}, v{ksh}, v{pD}
v_lshlrev_b32 v{pD+1}, v{ksh}, v{pD+1}
v_lshlrev_b32 v{pD+2}, v{ksh}, v{pD+2}
""")
for n in range(4):
    E(f"""
    v_cmp_eq_u32 vcc, {n}, v{kq}
    v_cndmask_b32 v{BD[0]+n}, 0, v{pD}, vcc
    v_cndmask_b32 v{BD[2]+n}, 0, v{pD+2}, vcc
    v_cmp_eq_u32 vcc, {n-8}, v{kq}
    v_cndmask_b32 v{BD[1]+n}, 0, v{pD+1}, vcc
    """)
E(f"""
v_lshlrev_b32 v{kq}, 6, v{vI}
v_lshl_add_u32 v{kq}, v{vQ}, 4, v{kq}
s_mul_i32 s{sT0}, s{sW}, 5120
s_add_u32 s{sT0}, s{sT0}, {L_XS}
v_add_u32 v{kq}, s{sT0}, v{kq}
""")
for s in range(5):
    E(f"ds_read_b128 {v4(XF[s])}, v{kq} offset:{s*1024}")
E(f"""
v_mul_f32 v{cLOCR}, v{cBQ}, v{Fr}
v_mul_f32 v{cLOCI}, v{cBQ}, v{Fi}
v_fma_f32 v{cLOCR}, v{cAQ}, v{Yr}, v{cLOCR}
v_fma_f32 v{cLOCI}, v{cAQ}, v{Yi}, v{cLOCI}
v_fma_f32 v{cLOCR}, -v{cAQ+1}, v{Yi}, v{cLOCR}
v_fma_f32 v{cLOCI}, v{cAQ+1}, v{Yr}, v{cLOCI}
v_fma_f32 v{cLOCR+1}, v{cMU}, v{cLOCR}, v{GR}
v_fma_f32 v{cLOCI+1}, v{cMU}, v{cLOCI}, v{GI}
v_fma_f32 v{cLOCR+1}, -v{cMU+1}, v{cLOCI}, v{cLOCR+1}
v_fma_f32 v{cLOCI+1}, v{cMU+1}, v{cLOCR}, v{cLOCI+1}
""")
for s in range(4):
    for t in range(2):
        E(f"v_mfma_f32_16x16x32_bf16 {v4(ACC2(s,t))}, {v4(XF[s])}, {v4(BD[t])}, 0")
E(f"v_mfma_f32_16x16x32_bf16 {v4(ACC8)}, {v4(XF[4])}, {v4(BD[2])}, 0")
P.add(mx_axpy(e1, cMKA, e0)); P.add(mx_axpy(e2, cMKA, e1)); P.add(mx_axpy(e3, cMKA, e2))
LOCM = mP
E(f"v_mov_b32 v{LOCM}, 0\nv_mov_b32 v{LOCM+1}, 0")
for w, src in ((1, e0), (2, e1), (3, e2)):
    E(f"""
    s_cmp_eq_u32 s{sW}, {w}
    s_cselect_b64 vcc, -1, 0
    v_cndmask_b32 v{LOCM}, v{LOCM}, v{src}, vcc
    v_cndmask_b32 v{LOCM+1}, v{LOCM+1}, v{src+1}, vcc
    """)
mX, mY, mS = e0, e0 + 1, e1
P.add(mx_axpy1(e3 + 1, cMMU, e3))
E(f"""
v_mov_b32 v{mX}, v{e3+1}
v_mov_b32 v{mY}, v{e3+1}
v_permlane16_swap_b32 v{mX}, v{mY}
""")
P.add(mx_axpy1(mY, cMNU, mX))
E(f"""
v_mov_b32 v{e2}, v{mY}
v_permlane32_swap_b32 v{mY}, v{e2}
v_mul_f32 v{mS}, v{cBQ}, v{mX}
""")
P.add(mx_axpy1(mS, cMAQ, mY))
E(f"v_mov_b32 v{mS+1}, v{e3}")
P.add(mx_axpy1(mS + 1, cMMU, mS))
P.add(mx_axpy(LOCM, cMKW, mS))
E(f"v_mov_b32 v{cAQ}, v{LOCM}\nv_mov_b32 v{cAQ+1}, v{LOCM+1}")
LOCM = cAQ
tp = vT
for s in range(16):
    ur, ui = U(s)
    tt = tp + 2 * (s & 1)
    P.add([pkmul(tt, cC1, ui, "h"), pkmul(ui, cC1, ui, "l"), pkfma(ui, cC1, ur, ui, "h"),
           f"v_pk_fma_f32 {v2(ur)}, {v2(cC1)}, {v2(ur)}, {v2(tt)} op_sel:[0,0,0] op_sel_hi:[0,1,1] neg_lo:[0,0,1] neg_hi:[0,0,1]"])
for s in range(4):
    um = UMs(s)
    tt = tp + 2 * (s & 1)
    P.add([f"v_mul_f32_dpp v{tt}, v{um}, v{cCM+1} {DPP8}", f"v_mul_f32_dpp v{tt+1}, v{um+1}, v{cCM+1} {DPP8}", pkfma(um, cCM, um, tt, "l")])
stamp()
E(f"s_mov_b32 s{sCNT}, 0")
E(f"v_cmp_ne_u32 vcc, 4, v{cchk}")
E("s_cbranch_vccz L_clr_ok")
P.label("L_clr_loop")
E(f"""
s_sleep 2
buffer_load_dword v{cchk}, v{vT+25}, {srd(sSRD_DBG)}, 0 offen sc1
s_add_u32 s{sCNT}, s{sCNT}, 1
s_cmp_gt_u32 s{sCNT}, {SPIN_MAX}
s_cbranch_scc1 L_clr_ok
s_waitcnt vmcnt(0)
v_cmp_ne_u32 vcc, 4, v{cchk}
s_cbranch_vccnz L_clr_loop
""")
P.label("L_clr_ok")
gA = [vT + 2 * kk for kk in range(4)]
gB = [vT + 8 + 4 * kk for kk in range(4)]
gX = vT + 24
E(f"s_mov_b32 s{sCNT}, 0")
P.label("L_g_loop")
for kk in range(4):
    E(f"buffer_load_dwordx2 {v2(gA[kk])}, v{vG1[kk]}, {srd(sSRD_AG)}, 0 offen sc1")
    E(f"buffer_load_dwordx4 {v4(gB[kk])}, v{vG2[kk]}, {srd(sSRD_AG)}, 0 offen sc1")
E(f"""
s_add_u32 s{sCNT}, s{sCNT}, 1
s_cmp_gt_u32 s{sCNT}, {SPIN_MAX}
s_waitcnt vmcnt(0)
""")
words = list(range(vT, vT + 24))
E(f"v_max3_u32 v{gX}, v{words[0]}, v{words[1]}, v{words[2]}")
E(f"v_max3_u32 v{gX+1}, v{words[3]}, v{words[4]}, v{words[5]}")
for n in range(6, 24, 4):
    E(f"v_max3_u32 v{gX}, v{gX}, v{words[n]}, v{words[n+1]}")
    if n + 3 < 24: E(f"v_max3_u32 v{gX+1}, v{gX+1}, v{words[n+2]}, v{words[n+3]}")
E(f"""
v_max_u32 v{gX}, v{gX}, v{gX+1}
v_cmp_eq_u32 vcc, -1, v{gX}
s_cbranch_scc1 L_g_ok
s_cbranch_vccnz L_g_loop
""")
P.label("L_g_ok")
stamp()
def chorner(T, Aa, R):
    return [pkfma(Aa, R, T, Aa, "l"), pkfma(Aa, R, T, Aa, "h", "s", neg0="lo")]
ga = []
for kk in (2, 1, 0): ga += chorner(gA[kk + 1], gA[kk], cR4)
ga += [pkmul(gA[1], cRQ, gA[0], "l"), pkfma(gA[1], cRQ, gA[0], gA[1], "h", "s", neg0="lo")]
gb = [f"v_pk_add_f32 {v2(gB[kk])}, {v2(gB[kk])}, {v2(gB[kk]+2)}" for kk in (3, 2, 1, 0)]
for kk in (2, 1, 0): gb += chorner(gB[kk + 1], gB[kk], cMR4)
gb += [pkmul(gB[1], cMRQ, gB[0], "l"), pkfma(gB[1], cMRQ, gB[0], gB[1], "h", "s", neg0="lo")]
P.add(interleave(gb, ga, start=3, every=1))
Ur, Ui, Vr, Vi = gA[1], gA[1] + 1, gB[1], gB[1] + 1
HR, HI, MR, MI = gA[2], gA[2] + 1, gA[3], gA[3] + 1
E(f"""
v_permlane16_swap_b32 v{Ur}, v{Ui}
v_permlane16_swap_b32 v{Vr}, v{Vi}
v_add_f32 v{Ur}, v{Ur}, v{Ui}
v_add_f32 v{Vr}, v{Vr}, v{Vi}
v_permlane32_swap_b32 v{Ur}, v{Vr}
v_add_f32 v{HR}, v{Ur}, v{Vr}
v_add_f32 v{MR}, v{Ur}, v{Vr}
v_permlane32_swap_b32 v{HR}, v{MR}
v_mov_b32 v{HI}, v{HR}
v_add_f32_dpp v{MI}, v{MR}, v{MR} {DPP8}
v_add_f32_dpp v{MR}, v{MR}, v{MR} {DPP8}
v_permlane16_swap_b32 v{HR}, v{HI}
v_permlane16_swap_b32 v{MR}, v{MI}
""")
P.add([pkfma(cLOCR, cGMr, HR, cLOCR, "n", "l"), pkfma(cLOCI, cGMr, HR, cLOCI, "n", "h"),
       pkfma(cLOCR, cGMi, HR, cLOCR, "n", "h", neg0="both"), pkfma(cLOCI, cGMi, HR, cLOCI, "n", "l"),
       pkfma(LOCM, cMX, MR, LOCM, "n", "l"), pkfma(LOCM, cMY, MR, LOCM, "n", "h")])
hsoff = {0: "0", 1: f"s{sK2}"}
hsoffI = {0: f"s{sK1}", 1: f"s{sK3}"}
p2 = []
hr, hi = cLOCR, cLOCI
for s in range(16):
    ur, ui = U(s)
    p2 += [pkfma(ur, cL1, hr, ur, "l"), pkfma(ui, cL1, hi, ui, "l"), pkfma(ur, cL1, hi, ur, "h", neg0="both"), pkfma(ui, cL1, hr, ui, "h")]
    hr, hi = ur, ui
    if s % 4 == 3:
        mp = s >> 2
        A_, B_ = UR(2 * mp), UR(2 * mp + 1)
        p2 += [f"v_cvt_pk_bf16_f32 v{A_}, v{A_}, v{A_+1}", f"v_cvt_pk_bf16_f32 v{A_+1}, v{A_+2}, v{A_+3}",
               f"v_cvt_pk_bf16_f32 v{A_+2}, v{B_}, v{B_+1}", f"v_cvt_pk_bf16_f32 v{A_+3}, v{B_+2}, v{B_+3}",
               Ins(f"buffer_store_dwordx4 {v4(A_)}, v{vHS}, {srd(sSRD_WS)}, {hsoff[mp>>1]} offen offset:{(mp&1)*1024} sc1", "hst")]
        A_, B_ = UI(2 * mp), UI(2 * mp + 1)
        p2 += [f"v_cvt_pk_bf16_f32 v{A_}, -v{A_}, -v{A_+1}", f"v_cvt_pk_bf16_f32 v{A_+1}, -v{A_+2}, -v{A_+3}",
               f"v_cvt_pk_bf16_f32 v{A_+2}, -v{B_}, -v{B_+1}", f"v_cvt_pk_bf16_f32 v{A_+3}, -v{B_+2}, -v{B_+3}",
               Ins(f"buffer_store_dwordx4 {v4(A_)}, v{vHS}, {srd(sSRD_WS)}, {hsoffI[mp>>1]} offen offset:{(mp&1)*1024} sc1", "hst")]
pm = []
hm = LOCM
for s in range(4):
    um = UMs(s)
    pm += mx_axpy(um, cLM, hm)
    hm = um
A_, B_ = UM(0), UM(1)
sgm = vT
pm += [f"v_cmp_lt_u32 vcc, 7, v{vI}", f"v_mov_b32 v{sgm}, 0x80008000", "s_nop 0", f"v_cndmask_b32 v{sgm}, 0, v{sgm}, vcc",
       f"v_cvt_pk_bf16_f32 v{A_}, v{A_}, v{A_+1}", f"v_cvt_pk_bf16_f32 v{A_+1}, v{A_+2}, v{A_+3}",
       f"v_cvt_pk_bf16_f32 v{A_+2}, v{B_}, v{B_+1}", f"v_cvt_pk_bf16_f32 v{A_+3}, v{B_+2}, v{B_+3}"]
pm += [f"v_xor_b32 v{A_+n}, v{sgm}, v{A_+n}" for n in range(4)]
pm += [Ins(f"buffer_store_dwordx4 {v4(A_)}, v{vHSM}, {srd(sSRD_WS)}, 0 offen sc1", "hst")]
P.add(interleave(p2, pm, start=1, every=3))
stamp()
for pc in range(6): P.add(c_read(pc))
P.wait_ds()
for pc in range(6, 12): P.add(flat(c_dma(pc)))
P.wait_vm("hst")
E(f"""
v_mov_b32 v{vT}, 1
s_mov_b32 exec_lo, 0
s_mov_b32 exec_hi, 0x10000
""")
E(f"buffer_store_dword v{vT}, v{vPUB}, {srd(sSRD_WS)}, 0 offen sc1", tag="flag")
E("s_mov_b64 exec, -1")
stamp()
for ks in range(24):
    E(f"ds_read_b128 {v4(C8V(ks))}, v{vR8[ks&1]} offset:{(ks>>1)*2048}")
w1, w2 = vT + 1, vT + 2
E(f"""
v_lshrrev_b32 v{w1}, 1, v{vQ}
v_lshlrev_b32 v{w1}, 11, v{w1}
v_lshrrev_b32 v{w2}, 2, v{vI}
v_lshl_add_u32 v{w1}, v{w2}, 4, v{w1}
v_bfe_u32 v{w2}, v{vI}, 1, 1
v_lshl_add_u32 v{w1}, v{w2}, 6, v{w1}
v_and_b32 v{w2}, 1, v{vQ}
v_lshl_add_u32 v{w1}, v{w2}, 7, v{w1}
v_and_b32 v{w2}, 1, v{vI}
v_lshl_add_u32 v{w1}, v{w2}, 9, v{w1}
v_lshl_add_u32 v{w1}, v{w2}, 3, v{w1}
s_and_b32 s{sT0}, s{sW}, 1
s_lshl_b32 s{sT0}, s{sT0}, 3
s_lshr_b32 s{sT1}, s{sW}, 1
s_lshl_b32 s{sT1}, s{sT1}, 10
s_or_b32 s{sT0}, s{sT0}, s{sT1}
v_xor_b32 v{vRH[0]}, s{sT0}, v{w1}
v_xor_b32 v{vRH[1]}, 8, v{vRH[0]}
v_xor_b32 v{vRH[2]}, 0x400, v{vRH[0]}
v_xor_b32 v{vRH[3]}, 0x408, v{vRH[0]}
v_and_b32 v{w2}, 1, v{vQ}
s_and_b32 s{sT0}, s{sW}, 1
v_xor_b32 v{w2}, s{sT0}, v{w2}
v_lshlrev_b32 v{w1}, 5, v{vQ}
v_lshl_add_u32 v{vO[0]}, v{w2}, 1, v{w1}
v_xor_b32 v{vO[1]}, 2, v{vO[0]}
v_mul_u32_u24 v{vO[0]}, 4608, v{vO[0]}
v_mul_u32_u24 v{vO[1]}, 4608, v{vO[1]}
s_mul_i32 s{sT0}, s{sC}, {128*4608}
s_mul_i32 s{sT1}, s{sHD}, 2304
s_add_u32 s{sT0}, s{sT0}, s{sT1}
s_mul_i32 s{sT1}, s{sE}, 576
s_add_u32 s{sT0}, s{sT0}, s{sT1}
v_lshlrev_b32 v{w1}, 2, v{vI}
v_add_u32 v{w1}, s{sT0}, v{w1}
v_add_u32 v{vO8}, v{vO[0]}, v{w1}
v_add_u32 v{vO8}, 512, v{vO8}
s_lshl_b32 s{sT1}, s{sW}, 7
v_add3_u32 v{vO[0]}, v{vO[0]}, v{w1}, s{sT1}
v_add3_u32 v{vO[1]}, v{vO[1]}, v{w1}, s{sT1}
""")
for pc in range(6, 12): P.add(c_read(pc))
P.wait_ds()
for pc in range(12, 18): P.add(flat(c_dma(pc)))
for pc in range(12, 18): P.add(c_read(pc))
P.wait_ds()
stamp()
vHD, vFA, vFD = vT + 8, vT + 9, vT + 10
E(f"""
v_lshlrev_b32 v{vHD}, 4, v{vL}
v_and_b32 v{vFA}, 31, v{vL}
v_lshlrev_b32 v{vFA}, 2, v{vFA}
v_add_u32 v{vFA}, s{sFLAGB}, v{vFA}
s_mov_b32 s{sCNT}, 0
s_lshl_b32 s{sT1}, s{sW}, 12
s_add_u32 s{sHSRC}, s{sHSRC}, s{sT1}
""")
P.label("L_f_loop")
E(f"""
buffer_load_dword v{vFD}, v{vFA}, {srd(sSRD_WS)}, 0 offen sc1
s_add_u32 s{sCNT}, s{sCNT}, 1
s_cmp_gt_u32 s{sCNT}, {SPIN_MAX}
s_waitcnt vmcnt(0)
v_cmp_ne_u32 vcc, 1, v{vFD}
s_cbranch_scc1 L_f_ok
s_cbranch_vccnz L_f_loop
""")
P.label("L_f_ok")
E("s_barrier")
stamp()
def h_dma(g):
    r = [[Ins(f"s_add_u32 m0, s{sT1}, {g*16384}"), Ins(f"s_add_u32 s{sKB}, s{sHSRC}, {g*16384}"),
          Ins(f"buffer_load_dwordx4 v{vHD}, {srd(sSRD_WS)}, s{sKB} offen sc1 lds", f"h{g}")]]
    for kk in (1, 2, 3):
        r.append([Ins(f"buffer_load_dwordx4 v{vHD}, {srd(sSRD_WS)}, s{sKB} offen offset:{1024*kk} sc1 lds", f"h{g}")])
    return r
def g2_reads(ks):
    b = ks & 1
    r = []
    if ks in (16, 32):
        r.append([Ins(f"v_add_u32 v{vRH[s]}, 0x10000, v{vRH[s]}") for s in range(4)])
    off = (ks % 16) * 4096
    for s in range(4):
        for rd in range(2):
            r.append(f"ds_read_b64_tr_b16 {v2(HF(b,s)+2*rd)}, v{vRH[s]} offset:{off+256*rd}")
    if ks >= 24:
        r.append(f"ds_read_b128 {v4(C8B(b))}, v{vR8[ks&1]} offset:{(ks>>1)*2048}")
    return r
def g2_mfma(ks):
    b = ks & 1
    r = []
    for s in range(4):
        for t in range(2):
            r.append(f"v_mfma_f32_16x16x32_bf16 {v4(ACC2(s,t))}, {v4(HF(b,s))}, {CF(ks,t)}, {v4(ACC2(s,t))}")
    c8 = v4(C8V(ks)) if ks < 24 else v4(C8B(b))
    r.append(f"v_mfma_f32_16x16x32_bf16 {v4(ACC8)}, {v4(HF(b,0))}, {c8}, {v4(ACC8)}")
    return r
HPRE = 3
for g in range(HPRE): P.add(flat(h_dma(g)))
P.wait_vm("h0")
E("s_barrier")
P.add(flat(g2_reads(0)))
pend = []
for ks in range(36):
    g = ks >> 2
    if ks % 4 == 0 and g + HPRE < 9: pend = h_dma(g + HPRE)
    if ks % 4 == 3 and g + 1 < 9:
        P.wait_vm(f"h{g+1}")
        E("s_barrier")
    rd = g2_reads(ks + 1) if ks + 1 < 36 else []
    body = []
    for gi, m in enumerate(g2_mfma(ks)):
        body.append(m)
        for _ in range(2 if gi == 0 else 1):
            if rd:
                x = rd.pop(0); body += x if isinstance(x, list) else [x]
        if gi in (3, 7) and pend and ks % 4 < 3: body += pend.pop(0)
    for x in rd: body += x if isinstance(x, list) else [x]
    P.add(body)
stamp()
for s in range(4):
    for r in range(4):
        for t in range(2):
            E(f"buffer_store_dword v{ACC2(s,t)+r}, v{vO[s&1]}, {srd(sSRD_OUT)}, s{sSO+4*(s>>1)+r} offen offset:{64*t}")
for r in range(4):
    E(f"buffer_store_dword v{ACC8+r}, v{vO8}, {srd(sSRD_OUT)}, s{sSO+r} offen")
if PROF:
    E("s_waitcnt vmcnt(0)")
    E("s_memtime s[64:65]")
    E("s_memrealtime s[66:67]")
    E("s_waitcnt lgkmcnt(0)")
    E(f"v_mov_b32 v{vT}, 0")
    PROFW = [("s75", None), ("s66", None)] + [(f"s{sSTAMP+2*n}", 1) for n in range(nstamp[0])] + [("s64", 1)]
    for n, (sr, sub) in enumerate(PROFW):
        if sub: E(f"s_sub_u32 {sr}, {sr}, s74")
        E(f"v_writelane_b32 v{vT}, {sr}, {n}")
    E(f"s_getreg_b32 s{sT0}, hwreg(HW_REG_XCC_ID)")
    E(f"v_writelane_b32 v{vT}, s{sT0}, 15")
    E(f"""
    s_lshl_b32 s{sT0}, s2, 8
    s_lshl_b32 s{sT1}, s{sW}, 6
    s_add_u32 s{sT0}, s{sT0}, s{sT1}
    s_add_u32 s{sT0}, s{sT0}, {WS_PROF}
    v_lshlrev_b32 v{vT+1}, 2, v{vL}
    s_mov_b32 exec_hi, 0
    s_mov_b32 exec_lo, 0xffff
    buffer_store_dword v{vT}, v{vT+1}, {srd(sSRD_WS)}, s{sT0} offen
    """)
P.label("L_end")
E("s_endpgm")
P.label("L_code_end")

hdr = open("concat_heads__ssm_conv_s5__ssm_conv_s5__prompt.s.ref").read().split("\n")
head = [l for l in hdr if l.startswith(";") and "@launch" not in l and "Override" not in l and "grid=ceil" not in l]
txt = "\n".join(head) + f"\n; @launch grid=(256,1,1) block=(256,1,1) lds={LDS_TOTAL}\n"
txt += f""".amdgcn_target "amdgcn-amd-amdhsa--gfx950"
.text
.globl {NAME}
.p2align 8
.type {NAME},@function
.set CODE_LAST, @CODELAST@
{NAME}:
"""
txt += P.finalize()
txt += f"""
.section .rodata,"a"
.p2align 6
.amdhsa_kernel {NAME}
  .amdhsa_next_free_vgpr 512
  .amdhsa_next_free_sgpr 102
  .amdhsa_accum_offset 256
  .amdhsa_group_segment_fixed_size 0
  .amdhsa_kernarg_size 168
  .amdhsa_user_sgpr_count 2
  .amdhsa_user_sgpr_kernarg_segment_ptr 1
  .amdhsa_system_sgpr_workgroup_id_x 1
.end_amdhsa_kernel
"""
import subprocess, re, tempfile, os
def code_last(t):
    with tempfile.TemporaryDirectory() as d:
        open(d + "/a.s", "w").write(t.replace("@CODELAST@", "0x1234"))
        subprocess.run(["clang", "-x", "assembler", "-target", "amdgcn-amd-amdhsa", "-mcpu=gfx950", "-c", d + "/a.s", "-o", d + "/a.o"], check=True)
        o = subprocess.run(["llvm-objdump", "-t", d + "/a.o"], capture_output=True, text=True).stdout
        sym = {}
        for l in o.splitlines():
            m = re.match(r"([0-9a-f]+) .* (L_\w+)$", l)
            if m: sym[m.group(2)] = int(m.group(1), 16)
        return sym["L_code_end"] - sym["L_pc"] - 4
cl = code_last(txt)
assert cl < 32768
txt = txt.replace("@CODELAST@", str(cl))
open(args.o, "w").write(txt)
print("code bytes", cl)
```

```python
import sys, argparse
from asmlib import Prog, Ins, interleave

ap = argparse.ArgumentParser()
ap.add_argument("--prof", action="store_true")
ap.add_argument("--dbgprof", action="store_true")
ap.add_argument("-o", default="concat_heads__ssm_conv_s5__ssm_conv_s5__prompt.s")
args = ap.parse_args()
PROF = args.prof or args.dbgprof
NAME = "concat_heads__ssm_conv_s5__ssm_conv_s5__prompt_kernel"

ROWB = 1152
XBYTES = 2048 * ROWB
WBYTES = 576 * ROWB
OUTB = 2048 * 4608
WS_FLAG = 0x40000
WS_PROF = 0x50000
WS_H = 0x100000
WS_SIZE = 0xA00000
HHALF = 147456
SPIN_MAX = 200000

L_X, L_W, L_M = 0, 49152, 98304
L_XS = 104448
L_SCR = 124928
L_C8 = 126976
LDS_TOTAL = 163840

sSRD_X, sSRD_BR, sSRD_BI, sSRD_MX, sSRD_CR, sSRD_CI, sSRD_WS, sSRD_OUT, sSRD_DBG, sSRD_AG, sSRD_C8 = 4, 8, 12, 16, 20, 24, 28, 32, 36, 40, 44
sHD, sC, sJ, sW, sHF, sE, sKB, sT0, sT1, sT2 = 48, 49, 50, 51, 52, 53, 54, 55, 56, 57
sM0X, sM0W, sM0M, sM0C, sM08, sHSRC = 58, 59, 60, 61, 62, 63
sPTR = 64
sSO = 64
sXSO = 72
sMSK = 74
sCNT = 76
sK1, sK2, sK3 = 77, 78, 79
sSTAMP = 80
def srd(b): return f"s[{b}:{b+3}]"

vL, vQ, vI = 1, 2, 3
vX = [4, 5, 6, 7]; vW = [8, 9, 10, 11]; vM = 12
vRA = [13, 14]; vRB = [15, 16]; vRM = [17, 18]; vRAM = [19, 20]
vPUB = 21
vG1 = [22, 23, 24, 25]; vG2 = [26, 27, 28, 29]
vHS, vHSM = 30, 31
UR = lambda m: 32 + 4 * m
UI = lambda m: 64 + 4 * m
UM = lambda m: 96 + 4 * m
cL1 = 104; cC1 = 106; cPAr = 108; cPAi = 110; cR4 = 112; cRQ = 114; cGMr = 116; cGMi = 118; cMU = 120; cNU = 122
cAQ = 124; cBQ = 126
cLM = 128; cCM = 130; cPMa = 132; cPMb = 134; cMR4 = 136; cMRQ = 138; cMX = 140; cMY = 142
cMMU = 144; cMNU = 146; cMKA = 148; cMKW = 150; cMAQ = 152; cSGN = 154
cLOCR = 156; cLOCI = 158
ACC2 = lambda s, t: 160 + 8 * s + 4 * t
ACC8 = 192
CFV = 196
vT = 228
vC = [4, 5, 6, 7]
vRC = [15, 16]
vR8 = [17, 18]
vRH = [8, 9, 10, 11]
vO = [19, 20]; vO8 = 12
C8V = lambda ks: 32 + 4 * ks
HF = lambda b, s: 128 + 16 * b + 4 * s
C8B = lambda b: 228 + 4 * b
def CF(ks, t):
    f = 2 * ks + t
    return f"a[{4*f}:{4*f+3}]" if f < 64 else f"v[{CFV+4*(f-64)}:{CFV+4*(f-64)+3}]"
FA = lambda b, m: 52 * b + 4 * m
FAM = lambda b, m: 52 * b + 32 + 4 * m
FB = lambda b, n: 52 * b + 40 + 4 * n
def v4(r): return f"v[{r}:{r+3}]"
def a4(r): return f"a[{r}:{r+3}]"
def v2(r): return f"v[{r}:{r+1}]"

P = Prog()
E = P.e
nstamp = [0]
def stamp():
    if PROF:
        k = nstamp[0]; nstamp[0] += 1
        assert sSTAMP + 2 * k + 1 <= 101
        E(f"s_memtime s[{sSTAMP+2*k}:{sSTAMP+2*k+1}]")

BCLO = "op_sel:[0,0,0] op_sel_hi:[0,1,1]"
def pkfma(d, s0, s1, s2, sel0="n", sel1="n", neg0=None):
    m = {"n": (0, 1), "l": (0, 0), "h": (1, 1), "s": (1, 0)}
    t = f"v_pk_fma_f32 {v2(d)}, {v2(s0)}, {v2(s1)}, {v2(s2)} op_sel:[{m[sel0][0]},{m[sel1][0]},0] op_sel_hi:[{m[sel0][1]},{m[sel1][1]},1]"
    if neg0 in ("both", "lo"): t += " neg_lo:[1,0,0]"
    if neg0 in ("both", "hi"): t += " neg_hi:[1,0,0]"
    return t
def pkmul(d, s0, s1, sel0="n", sel1="n"):
    m = {"n": (0, 1), "l": (0, 0), "h": (1, 1), "s": (1, 0)}
    return f"v_pk_mul_f32 {v2(d)}, {v2(s0)}, {v2(s1)} op_sel:[{m[sel0][0]},{m[sel1][0]}] op_sel_hi:[{m[sel0][1]},{m[sel1][1]}]"
DPP8 = "row_ror:8 row_mask:0xf bank_mask:0xf"

E(f"""
s_cmp_ge_u32 s2, 256
s_cbranch_scc1 L_end
s_and_b32 s3, s2, 7
s_lshr_b32 s{sT0}, s2, 3
s_and_b32 s{sHD}, s3, 1
s_mul_i32 s{sT1}, s{sHD}, 72
s_load_dwordx16 s[64:79], s[0:1], s{sT1}
s_load_dwordx2 s[80:81], s[0:1], s{sT1} offset:64
s_load_dwordx4 s[84:87], s[0:1], 144
s_load_dwordx2 s[88:89], s[0:1], 160
s_getpc_b64 s[90:91]
""")
P.label("L_pc")
E(f"""
s_lshr_b32 s3, s3, 1
s_lshl_b32 s3, s3, 2
s_lshr_b32 s{sC}, s{sT0}, 3
s_add_u32 s{sC}, s{sC}, s3
s_and_b32 s{sJ}, s{sT0}, 7
s_lshr_b32 s{sHF}, s{sJ}, 2
s_and_b32 s{sE}, s{sJ}, 3
v_lshrrev_b32 v{vT}, 6, v0
v_and_b32 v{vL}, 63, v0
v_readfirstlane_b32 s{sW}, v{vT}
v_lshrrev_b32 v{vQ}, 4, v{vL}
v_and_b32 v{vI}, 15, v{vL}
""")
if PROF:
    E("s_memtime s[92:93]")
    E("s_memrealtime s[94:95]")
E(f"v_lshlrev_b32 v{vT+1}, 7, v0")
E(f"v_min_u32 v{vT+1}, CODE_LAST, v{vT+1}")
E(f"global_load_dword v{vT+27}, v{vT+1}, s[90:91]", tag="cpf")
a_, pos_, sw_, f_ = vT + 2, vT + 3, vT + 4, vT + 5
E(f"""
v_lshrrev_b32 v{a_}, 3, v{vL}
v_and_b32 v{pos_}, 7, v{vL}
v_lshrrev_b32 v{vT+6}, 1, v{a_}
v_xor_b32 v{sw_}, v{pos_}, v{vT+6}
v_lshlrev_b32 v{sw_}, 4, v{sw_}
v_lshrrev_b32 v{f_}, 2, v{a_}
v_lshlrev_b32 v{f_}, 5, v{f_}
v_and_b32 v{vT+7}, 1, v{a_}
v_lshl_add_u32 v{f_}, v{vT+7}, 4, v{f_}
v_and_b32 v{vT+7}, 1, v{vT+6}
v_add_u32 v{f_}, v{f_}, v{vT+7}
v_mul_u32_u24 v{f_}, {ROWB}, v{f_}
v_mul_u32_u24 v{vT+8}, {ROWB}, v{a_}
s_lshl_b32 s{sT0}, s{sC}, 7
s_lshl_b32 s{sT1}, s{sW}, 2
s_add_u32 s{sT0}, s{sT0}, s{sT1}
s_mul_i32 s{sT0}, s{sT0}, {ROWB}
s_add_u32 s{sT0}, s{sT0}, 4096
v_add3_u32 v{vX[0]}, v{f_}, v{sw_}, s{sT0}
v_xor_b32 v{vT+9}, 64, v{sw_}
s_add_u32 s{sT0}, s{sT0}, {64*ROWB-1024}
v_add3_u32 v{vX[1]}, v{f_}, v{vT+9}, s{sT0}
v_add_u32 v{vX[2]}, {2*ROWB-2048}, v{vX[0]}
v_add_u32 v{vX[3]}, {2*ROWB-2048}, v{vX[1]}
s_mul_i32 s{sT0}, s{sJ}, 72
s_lshl_b32 s{sT1}, s{sW}, 4
s_add_u32 s{sT1}, s{sT0}, s{sT1}
s_mul_i32 s{sT2}, s{sT1}, {ROWB}
s_add_u32 s{sT2}, s{sT2}, 4096
v_add3_u32 v{vW[0]}, v{vT+8}, v{sw_}, s{sT2}
s_add_u32 s{sT2}, s{sT2}, {8*ROWB-1024}
v_add3_u32 v{vW[1]}, v{vT+8}, v{vT+9}, s{sT2}
v_subrev_u32 v{vW[2]}, 2048, v{vW[0]}
v_subrev_u32 v{vW[3]}, 2048, v{vW[1]}
""")
E(f"""
v_add_u32 v{vT+10}, s{sT1}, v{vI}
v_lshlrev_b32 v{vT+10}, 1, v{vT+10}
v_and_b32 v{vT+11}, 7, v{vI}
v_add_u32 v{vT+11}, s{sT0}, v{vT+11}
v_lshlrev_b32 v{vT+11}, 1, v{vT+11}
s_and_b32 s{sT1}, s{sW}, 1
s_lshl_b32 s{sT1}, s{sT1}, 2
s_add_u32 s{sT0}, s{sT0}, s{sT1}
s_add_u32 s{sT0}, s{sT0}, 64
s_mul_i32 s{sT0}, s{sT0}, {ROWB}
s_add_u32 s{sT0}, s{sT0}, 4096
s_lshl_b32 s{sT1}, s{sW}, 1
v_add_u32 v{vT+12}, s{sT1}, v{vT+6}
v_xor_b32 v{vT+12}, v{pos_}, v{vT+12}
v_lshlrev_b32 v{vT+12}, 4, v{vT+12}
v_add3_u32 v{vM}, v{vT+8}, v{vT+12}, s{sT0}
s_lshl_b32 s{sM0X}, s{sW}, 12
s_add_u32 s{sM0W}, s{sM0X}, {L_W}
s_lshl_b32 s{sM0M}, s{sW}, 9
s_add_u32 s{sM0M}, s{sM0M}, {L_M}
s_mov_b32 s{sKB}, 0
s_waitcnt lgkmcnt(0)
""")
def mk_srd(d, p, size, shift=0):
    if shift:
        E(f"s_sub_u32 s{d}, s{p}, {shift}\ns_subb_u32 s{d+1}, s{p+1}, 0")
    else:
        E(f"s_mov_b32 s{d}, s{p}\ns_mov_b32 s{d+1}, s{p+1}")
    E(f"s_mov_b32 s{d+2}, {size+shift}\ns_mov_b32 s{d+3}, 0x20000")
mk_srd(sSRD_X, 64, XBYTES, 4096)
mk_srd(sSRD_BR, 70, WBYTES, 4096)
mk_srd(sSRD_BI, 72, WBYTES, 4096)
E(f"""
s_cmp_lt_u32 s{sW}, 2
s_cselect_b32 s{sSRD_MX}, s{sSRD_BR}, s{sSRD_BI}
s_cselect_b32 s{sSRD_MX+1}, s{sSRD_BR+1}, s{sSRD_BI+1}
s_mov_b32 s{sSRD_MX+2}, {WBYTES+4096}
s_mov_b32 s{sSRD_MX+3}, 0x20000
""")
pL = 140
pD = 156
E(f"global_load_ushort v{pL+0}, v{vT+10}, s[66:67]")
E(f"global_load_ushort v{pL+1}, v{vT+10}, s[68:69]")
E(f"global_load_ushort v{pL+2}, v{vT+10}, s[78:79]")
E(f"global_load_ushort v{pL+3}, v{vT+11}, s[66:67] offset:128")
E(f"global_load_ushort v{pL+4}, v{vT+11}, s[68:69] offset:128")
E(f"global_load_ushort v{pL+5}, v{vT+11}, s[78:79] offset:128")

def dma_stage(slot, tag):
    g = []
    g.append([Ins(f"s_add_u32 m0, s{sM0X}, {slot*16384}"), Ins(f"buffer_load_dwordx4 v{vX[0]}, {srd(sSRD_X)}, s{sKB} offen lds", tag)])
    for k in (1, 2, 3):
        g.append([Ins(f"buffer_load_dwordx4 v{vX[k]}, {srd(sSRD_X)}, s{sKB} offen offset:{1024*k} lds", tag)])
    g.append([Ins(f"s_add_u32 m0, s{sM0W}, {slot*16384}"), Ins(f"buffer_load_dwordx4 v{vW[0]}, {srd(sSRD_BR)}, s{sKB} offen lds", tag)])
    g.append([Ins(f"buffer_load_dwordx4 v{vW[1]}, {srd(sSRD_BR)}, s{sKB} offen offset:1024 lds", tag)])
    g.append([Ins(f"buffer_load_dwordx4 v{vW[2]}, {srd(sSRD_BI)}, s{sKB} offen offset:2048 lds", tag)])
    g.append([Ins(f"buffer_load_dwordx4 v{vW[3]}, {srd(sSRD_BI)}, s{sKB} offen offset:3072 lds", tag)])
    g.append([Ins(f"s_add_u32 m0, s{sM0M}, {slot*2048}"), Ins("s_mov_b32 exec_hi, 0"),
              Ins(f"buffer_load_dwordx4 v{vM}, {srd(sSRD_MX)}, s{sKB} offen lds", tag), Ins("s_mov_b32 exec_hi, -1"),
              Ins(f"s_add_u32 s{sKB}, s{sKB}, 128")])
    return g
def flat(g):
    o = []
    for x in g: o += x if isinstance(x, list) else [x]
    return o

P.add(flat(dma_stage(0, "st0")))
mk_srd(sSRD_WS, 88, WS_SIZE)
mk_srd(sSRD_DBG, 86, 256)
E(f"""
s_lshl_b32 s{sT0}, s{sHD}, 3
s_add_u32 s{sT0}, s{sT0}, s{sJ}
s_mul_i32 s{sT0}, s{sT0}, 12288
s_add_u32 s{sSRD_AG}, s88, s{sT0}
s_addc_u32 s{sSRD_AG+1}, s89, 0
s_mov_b32 s{sSRD_AG+2}, 12288
s_mov_b32 s{sSRD_AG+3}, 0x20000
s_mul_i32 s{sT1}, s{sC}, 768
s_add_u32 s{sT0}, s{sT0}, s{sT1}
s_lshl_b32 s{sT2}, s{sW}, 7
v_lshlrev_b32 v{vT+13}, 3, v{vI}
v_add_u32 v{vT+13}, s{sT2}, v{vT+13}
v_and_b32 v{vT+14}, 7, v{vI}
v_lshlrev_b32 v{vT+14}, 5, v{vT+14}
v_lshrrev_b32 v{vT+15}, 3, v{vI}
v_lshl_add_u32 v{vT+16}, v{vQ}, 2, v{vT+13}
v_add_u32 v{vPUB}, s{sT0}, v{vT+16}
s_lshl_b32 s{sT2}, s{sW}, 3
s_add_u32 s{sT2}, s{sT2}, s{sT0}
s_add_u32 s{sT2}, s{sT2}, 512
v_lshl_add_u32 v{vT+16}, v{vT+15}, 2, v{vT+14}
v_add_u32 v{vT+16}, s{sT2}, v{vT+16}
v_cmp_eq_u32 vcc, 2, v{vQ}
v_cndmask_b32 v{vPUB}, v{vPUB}, v{vT+16}, vcc
s_lshl_b32 s{sT0}, s{sHD}, 4
s_add_u32 s{sT0}, s{sT0}, s{sC}
s_mul_i32 s{sHSRC}, s{sT0}, {2*HHALF}
s_add_u32 s{sHSRC}, s{sHSRC}, {WS_H}
s_lshl_b32 s{sT0}, s{sT0}, 7
s_add_u32 s{sT0}, s{sT0}, {WS_FLAG}
s_mov_b32 s{sM08}, s{sT0}
s_lshl_b32 s{sT2}, s{sJ}, 4
s_add_u32 s{sT0}, s{sT0}, s{sT2}
s_lshl_b32 s{sT2}, s{sW}, 2
s_add_u32 s{sT0}, s{sT0}, s{sT2}
v_mov_b32 v{vT+16}, s{sT0}
v_cmp_eq_u32 vcc, 48, v{vL}
v_cndmask_b32 v{vPUB}, v{vPUB}, v{vT+16}, vcc
v_mov_b32 v{vT+16}, 0x7ffffff0
v_cmp_lt_u32 vcc, 48, v{vL}
v_cndmask_b32 v{vPUB}, v{vPUB}, v{vT+16}, vcc
v_mov_b32 v{vT+17}, -1
buffer_store_dword v{vT+17}, v{vPUB}, {srd(sSRD_WS)}, 0 offen sc1
""", tag="clr")
sFLAGB = 3
E(f"s_mov_b32 s{sFLAGB}, s{sM08}")
P.add(flat(dma_stage(1, "st1")))
P.add(flat(dma_stage(2, "st2")))
E(f"""
s_sub_u32 s{sT1}, s{sC}, 1
v_sub_u32 v{vT+16}, s{sT1}, v{vQ}
v_mul_i32_i24 v{vT+16}, 768, v{vT+16}
v_add_u32 v{vG1[0]}, v{vT+16}, v{vT+13}
v_lshl_add_u32 v{vT+17}, v{vT+15}, 4, v{vT+14}
v_add_u32 v{vT+17}, 512, v{vT+17}
v_add_u32 v{vG2[0]}, v{vT+16}, v{vT+17}
""")
for k in (1, 2, 3):
    E(f"v_subrev_u32 v{vG1[k]}, {3072*k}, v{vG1[0]}\nv_subrev_u32 v{vG2[k]}, {3072*k}, v{vG2[0]}")
E(f"""
v_lshrrev_b32 v{vT+16}, 1, v{vI}
v_xor_b32 v{vT+16}, v{vQ}, v{vT+16}
v_lshlrev_b32 v{vT+16}, 4, v{vT+16}
v_lshl_add_u32 v{vRA[0]}, v{vI}, 7, v{vT+16}
v_xor_b32 v{vRA[1]}, 64, v{vRA[0]}
v_add_u32 v{vRAM[0]}, s{sM0X}, v{vRA[0]}
v_add_u32 v{vRAM[1]}, s{sM0X}, v{vRA[1]}
v_add_u32 v{vRB[0]}, s{sM0W}, v{vRA[0]}
v_add_u32 v{vRB[1]}, s{sM0W}, v{vRA[1]}
v_add_u32 v{vRM[0]}, {L_M}, v{vRA[0]}
v_add_u32 v{vRM[1]}, {L_M}, v{vRA[1]}
""")
E(f"""
v_and_b32 v{vT+16}, 3, v{vI}
v_lshlrev_b32 v{vT+16}, 4, v{vT+16}
v_lshrrev_b32 v{vT+17}, 1, v{vQ}
v_lshl_add_u32 v{vT+16}, v{vT+17}, 6, v{vT+16}
v_bfe_u32 v{vT+17}, v{vI}, 2, 1
v_lshl_add_u32 v{vT+16}, v{vT+17}, 8, v{vT+16}
v_and_b32 v{vT+17}, 1, v{vQ}
v_lshl_add_u32 v{vT+16}, v{vT+17}, 9, v{vT+16}
s_mul_i32 s{sT0}, s{sJ}, 9
s_lshl_b32 s{sT1}, s{sW}, 1
s_add_u32 s{sT1}, s{sT1}, s{sT0}
v_add_u32 v{vT+17}, s{sT1}, v{vT+15}
v_lshrrev_b32 v{vT+18}, 1, v{vT+17}
v_lshlrev_b32 v{vT+18}, 11, v{vT+18}
v_and_b32 v{vT+17}, 1, v{vT+17}
v_lshl_add_u32 v{vT+18}, v{vT+17}, 7, v{vT+18}
v_add3_u32 v{vHS}, v{vT+16}, v{vT+18}, s{sHSRC}
s_add_u32 s{sT0}, s{sT0}, 8
s_lshr_b32 s{sT1}, s{sT0}, 1
s_lshl_b32 s{sT1}, s{sT1}, 11
s_and_b32 s{sT0}, s{sT0}, 1
s_lshl_b32 s{sT0}, s{sT0}, 7
s_add_u32 s{sT0}, s{sT0}, s{sT1}
s_and_b32 s{sT1}, s{sW}, 1
s_lshl_b32 s{sT1}, s{sT1}, 10
s_add_u32 s{sT0}, s{sT0}, s{sT1}
s_lshr_b32 s{sT1}, s{sW}, 1
s_mul_i32 s{sT1}, s{sT1}, {HHALF}
s_add_u32 s{sT0}, s{sT0}, s{sT1}
s_add_u32 s{sT0}, s{sT0}, s{sHSRC}
v_mul_u32_u24 v{vT+17}, 73728, v{vT+15}
v_add3_u32 v{vHSM}, v{vT+16}, v{vT+17}, s{sT0}
s_mul_i32 s{sT0}, s{sHF}, {HHALF}
s_add_u32 s{sHSRC}, s{sHSRC}, s{sT0}
""")
mk_srd(sSRD_CR, 74, WBYTES, 4096)
mk_srd(sSRD_CI, 76, WBYTES, 4096)
mk_srd(sSRD_OUT, 84, OUTB)
E(f"""
s_cmp_lt_u32 s{sW}, 2
s_cselect_b32 s{sSRD_C8}, s{sSRD_CR}, s{sSRD_CI}
s_cselect_b32 s{sSRD_C8+1}, s{sSRD_CR+1}, s{sSRD_CI+1}
s_mov_b32 s{sSRD_C8+2}, {WBYTES+4096}
s_mov_b32 s{sSRD_C8+3}, 0x20000
""")
E(f"""
s_mul_i32 s{sT0}, s{sE}, 288
s_lshl_b32 s{sT1}, s{sW}, 6
v_lshlrev_b32 v{vT+16}, 1, v{vI}
v_add_u32 v{vT+16}, s{sT0}, v{vT+16}
v_add_u32 v{vT+17}, s{sT1}, v{vT+16}
global_load_ushort v{pD}, v{vT+17}, s[80:81]
global_load_ushort v{pD+1}, v{vT+17}, s[80:81] offset:32
global_load_ushort v{pD+2}, v{vT+16}, s[80:81] offset:256
""")
kSW, kSW4, kA8, kF = 250, 251, 252, 253
E(f"""
v_mov_b32 v{kSW}, v{sw_}
v_mov_b32 v{kSW4}, v{vT+9}
v_mov_b32 v{kA8}, v{vT+8}
""")
vV8, vXS0, vXS1, vXS8 = 254, 246, 247, 248
E(f"""
s_mul_i32 s{sT0}, s{sE}, 144
s_and_b32 s{sT1}, s{sW}, 1
s_lshl_b32 s{sT2}, s{sT1}, 3
s_add_u32 s{sT0}, s{sT0}, s{sT2}
s_add_u32 s{sT0}, s{sT0}, 128
s_mul_i32 s{sT0}, s{sT0}, {ROWB}
s_add_u32 s{sT0}, s{sT0}, 4096
s_lshl_b32 s{sT2}, s{sT1}, 6
v_xor_b32 v{vT+16}, s{sT2}, v{kSW}
v_add3_u32 v{vV8}, v{kA8}, v{vT+16}, s{sT0}
s_lshr_b32 s{sT2}, s{sW}, 1
s_mul_i32 s{sM08}, s{sT2}, 18432
s_lshl_b32 s{sT0}, s{sT1}, 10
s_add_u32 s{sM08}, s{sM08}, s{sT0}
s_add_u32 s{sM08}, s{sM08}, {L_C8}
""")
E(f"""
v_lshlrev_b32 v{vT+16}, 5, v{vQ}
v_bfe_u32 v{vT+17}, v{vL}, 2, 1
v_lshl_add_u32 v{vT+16}, v{vT+17}, 4, v{vT+16}
v_bfe_u32 v{vT+17}, v{vL}, 3, 1
v_add_u32 v{vT+16}, v{vT+16}, v{vT+17}
v_and_b32 v{vT+17}, 1, v{vQ}
v_xor_b32 v{vT+17}, s{sT1}, v{vT+17}
v_lshl_add_u32 v{vT+14}, v{vT+17}, 1, v{vT+16}
v_xor_b32 v{vT+17}, 1, v{vT+17}
v_lshl_add_u32 v{vT+15}, v{vT+17}, 1, v{vT+16}
v_mul_u32_u24 v{vT+14}, {ROWB}, v{vT+14}
v_mul_u32_u24 v{vT+15}, {ROWB}, v{vT+15}
v_and_b32 v{vT+16}, 3, v{vL}
v_lshlrev_b32 v{vT+16}, 4, v{vT+16}
s_mul_i32 s{sT0}, s{sC}, {128*ROWB}
s_mul_i32 s{sT2}, s{sE}, 288
s_add_u32 s{sT0}, s{sT0}, s{sT2}
s_add_u32 s{sT0}, s{sT0}, 4096
s_lshl_b32 s{sT2}, s{sW}, 6
s_add_u32 s{sT2}, s{sT2}, s{sT0}
v_add3_u32 v{vXS0}, v{vT+14}, v{vT+16}, s{sT2}
v_add3_u32 v{vXS1}, v{vT+15}, v{vT+16}, s{sT2}
v_and_b32 v{vT+16}, 16, v{vT+16}
s_add_u32 s{sT0}, s{sT0}, 256
v_add3_u32 v{vXS8}, v{vT+14}, v{vT+16}, s{sT0}
""")
E(f"""
s_lshr_b32 s{sT0}, s{sW}, 1
s_lshl_b32 s{sT1}, s{sHF}, 1
s_add_u32 s{sT2}, s{sT1}, s{sT0}
s_xor_b32 s{sT0}, s{sT0}, 1
s_add_u32 s{sT1}, s{sT1}, s{sT0}
s_mul_i32 s{sXSO}, s{sT2}, {4*ROWB}
s_mul_i32 s{sXSO+1}, s{sT1}, {4*ROWB}
s_mul_i32 s{sSO}, s{sT2}, {4*4608}
s_mul_i32 s{sSO+4}, s{sT1}, {4*4608}
""")
for sh in range(2):
    for r in (1, 2, 3):
        E(f"s_add_u32 s{sSO+4*sh+r}, s{sSO+4*sh}, {(16*(r&1)+(r>>1))*4608}")
E(f"s_mov_b32 s{sK1}, 73728\ns_mov_b32 s{sK2}, {HHALF}\ns_mov_b32 s{sK3}, {HHALF+73728}")
E(f"s_mul_i32 s{sM0C}, s{sW}, 24576")

K = []
def k(t):
    for line in t.strip().split("\n"):
        if line.strip(): K.append(line.strip())
LOG2E = "0x3fb8aa3b"; INV2PI = "0x3e22f983"
t0, t1, t2, t3, t4, t5 = [vT + n for n in range(6)]
zR = [vT + 6, vT + 8]; zA = [vT + 7, vT + 9]
fQ, fN = vT + 10, vT + 11
def power(dr, di, st, n):
    src = n if isinstance(n, str) else f"v{n}"
    k(f"""
    v_mul_f32 v{t0}, {src}, v{zR[st]}
    v_mul_f32 v{t1}, {src}, v{zA[st]}
    v_exp_f32 v{t0}, v{t0}
    v_fract_f32 v{t1}, v{t1}
    v_cos_f32 v{t2}, v{t1}
    v_sin_f32 v{t1}, v{t1}
    v_mul_f32 v{dr}, v{t0}, v{t2}
    v_mul_f32 v{di}, v{t0}, v{t1}
    """)
def cmul(dr, di, ar, ai, br, bi):
    k(f"""
    v_mul_f32 v{dr}, v{ar}, v{br}
    v_mul_f32 v{di}, v{ar}, v{bi}
    v_fma_f32 v{dr}, -v{ai}, v{bi}, v{dr}
    v_fma_f32 v{di}, v{ai}, v{br}, v{di}
    """)
def fl(x):
    import struct
    return "0x%08x" % struct.unpack("<I", struct.pack("<f", float(x)))[0]
for st, (cl, cc) in enumerate(((cL1, cC1), (cLM, cCM))):
    pr, pi, pd = pL + 3 * st, pL + 3 * st + 1, pL + 3 * st + 2
    k(f"""
    v_lshlrev_b32 v{pr}, 16, v{pr}
    v_lshlrev_b32 v{pi}, 16, v{pi}
    v_lshlrev_b32 v{pd}, 16, v{pd}
    v_mul_f32 v{pd}, {LOG2E}, v{pd}
    v_exp_f32 v{pd}, v{pd}
    v_max_f32 v{t4}, |v{pr}|, |v{pi}|
    v_cvt_pk_bf16_f32 v{pd}, v{pd}, v{pd}
    v_rcp_f32 v{t5}, v{t4}
    v_lshlrev_b32 v{pd}, 16, v{pd}
    v_mul_f32 v{zR[st]}, v{pd}, v{pr}
    v_mul_f32 v{zA[st]}, v{pd}, v{pi}
    v_mul_f32 v{zR[st]}, {LOG2E}, v{zR[st]}
    v_mul_f32 v{zA[st]}, {INV2PI}, v{zA[st]}
    v_exp_f32 v{t0}, v{zR[st]}
    v_rndne_f32 v{t1}, v{zA[st]}
    v_sub_f32 v{zA[st]}, v{zA[st]}, v{t1}
    v_cos_f32 v{t2}, v{zA[st]}
    v_sin_f32 v{t1}, v{zA[st]}
    v_mul_f32 v{cl}, v{t0}, v{t2}
    v_mul_f32 v{cl+1}, v{t0}, v{t1}
    v_mul_f32 v{pr}, v{pr}, v{t5}
    v_mul_f32 v{pi}, v{pi}, v{t5}
    v_mul_f32 v{t0}, v{pr}, v{pr}
    v_fma_f32 v{t0}, v{pi}, v{pi}, v{t0}
    v_mul_f32 v{t0}, v{t0}, v{t4}
    v_rcp_f32 v{t0}, v{t0}
    v_add_f32 v{t1}, -1.0, v{cl}
    v_mul_f32 v{t2}, v{t1}, v{pr}
    v_fma_f32 v{t2}, v{cl+1}, v{pi}, v{t2}
    v_mul_f32 v{t3}, v{cl+1}, v{pr}
    v_fma_f32 v{t3}, -v{t1}, v{pi}, v{t3}
    v_add_f32 v{t0}, v{t0}, v{t0}
    v_mul_f32 v{cc}, v{t2}, v{t0}
    v_mul_f32 v{cc+1}, v{t3}, v{t0}
    """)
k(f"""
v_cvt_f32_u32 v{fQ}, v{vQ}
v_cmp_gt_u32 vcc, 8, v{vI}
v_mov_b32 v{t0}, 1.0
v_cndmask_b32 v{cSGN}, v{t0}, -1.0, vcc
""".replace("v_cndmask_b32 v%d, v%d, -1.0, vcc" % (cSGN, t0), "v_cndmask_b32_e64 v%d, v%d, -1.0, vcc" % (cSGN, t0)))
u0, u1 = vT + 12, vT + 13
k(f"v_mul_f32 v{fN}, {fl(-32)}, v{fQ}\nv_add_f32 v{fN}, {fl(112)}, v{fN}")
power(u0, u1, 0, fN); cmul(cPAr, cPAi, u0, u1, cC1, cC1 + 1)
k(f"v_add_f32 v{fN}, {fl(-16)}, v{fN}")
power(u0, u1, 0, fN); cmul(cPAr + 1, cPAi + 1, u0, u1, cC1, cC1 + 1)
fW = vT + 14
k(f"v_cvt_f32_u32 v{fW}, s{sW}\nv_mul_f32 v{fW}, 4.0, v{fW}")
k(f"v_sub_f32 v{fN}, v{fN}, v{fW}\nv_add_f32 v{fN}, {fl(28)}, v{fN}")
power(u0, u1, 1, fN); cmul(cPMa, cPMb, u0, u1, cCM, cCM + 1)
k(f"v_add_f32 v{fN}, {fl(-16)}, v{fN}")
power(u0, u1, 1, fN); cmul(cPMa + 1, cPMb + 1, u0, u1, cCM, cCM + 1)
k(f"""
v_mul_f32 v{cPMb}, v{cSGN}, v{cPMb}
v_mul_f32 v{cPMb+1}, v{cSGN}, v{cPMb+1}
v_mul_f32 v{cLM+1}, v{cSGN}, v{cLM+1}
v_mul_f32 v{cCM+1}, v{cSGN}, v{cCM+1}
""")
power(cR4, cR4 + 1, 0, fl(512)); power(cMR4, cMR4 + 1, 1, fl(512))
k(f"v_mul_f32 v{fN}, {fl(128)}, v{fQ}")
power(cRQ, cRQ + 1, 0, fN); power(cMRQ, cMRQ + 1, 1, fN)
power(cMU, cMU + 1, 0, fl(16)); power(cNU, cNU + 1, 0, fl(32))
power(cMMU, cMMU + 1, 1, fl(16)); power(cMNU, cMNU + 1, 1, fl(32)); power(cMKA, cMKA + 1, 1, "4.0"); power(cMKW, cMKW + 1, 1, fW)
for r in (cMMU, cMNU, cMKA, cMKW):
    k(f"v_mul_f32 v{r+1}, v{cSGN}, v{r+1}")
k(f"v_mul_f32 v{fN}, {fl(32)}, v{fQ}")
power(cGMr, cGMi, 0, fN)
k(f"v_add_f32 v{fN}, {fl(16)}, v{fN}")
power(cGMr + 1, cGMi + 1, 0, fN)
k(f"v_add_f32 v{fN}, v{fN}, v{fW}")
k(f"v_cmp_gt_u32 vcc, 8, v{vI}")
for b in (1, 0):
    power(u0, u1, 1, fN)
    k(f"""
    v_cndmask_b32 v{cMX+b}, v{u1}, v{u0}, vcc
    v_cndmask_b32_e64 v{cMY+b}, v{u0}, -v{u1}, vcc
    """)
    if b: k(f"v_add_f32 v{fN}, {fl(-16)}, v{fN}")
k(f"""
v_cmp_eq_u32 vcc, 3, v{vQ}
v_cndmask_b32 v{cAQ+1}, 0, v{cNU+1}, vcc
v_cndmask_b32 v{cMAQ+1}, 0, v{cMNU+1}, vcc
v_cndmask_b32 v{cAQ}, 1.0, v{cNU}, vcc
v_cndmask_b32 v{cMAQ}, 1.0, v{cMNU}, vcc
v_cmp_lt_u32 vcc, 1, v{vQ}
v_cndmask_b32 v{cAQ}, 0, v{cAQ}, vcc
v_cndmask_b32 v{cMAQ}, 0, v{cMAQ}, vcc
v_and_b32 v{t0}, 1, v{vQ}
v_cvt_f32_u32 v{cBQ}, v{t0}
""")

def g1_reads(n):
    kc, s, b = n >> 1, n & 1, n & 1
    sl = kc % 3
    r = []
    r.append(f"ds_read_b128 {a4(FB(b,0))}, v{vRB[s]} offset:{sl*16384}")
    r.append(f"ds_read_b128 {a4(FA(b,0))}, v{vRA[s]} offset:{sl*16384}")
    r.append(f"ds_read_b128 {a4(FB(b,1))}, v{vRB[s]} offset:{sl*16384+2048}")
    for m in range(1, 8):
        r.append(f"ds_read_b128 {a4(FA(b,m))}, v{vRA[s]} offset:{sl*16384+m*2048}")
    r.append(f"ds_read_b128 {a4(FB(b,2))}, v{vRM[s]} offset:{sl*2048}")
    for m in range(2):
        r.append(f"ds_read_b128 {a4(FAM(b,m))}, v{vRAM[s]} offset:{sl*16384+m*2048}")
    return r
def g1_mfma(n):
    b = n & 1
    r = []
    def mf(acc, a, bb):
        c = "0" if n == 0 else v4(acc)
        r.append(f"v_mfma_f32_16x16x32_bf16 {v4(acc)}, {a4(a)}, {a4(bb)}, {c}")
    for m in range(8):
        mf(UR(m), FA(b, m), FB(b, 0)); mf(UI(m), FA(b, m), FB(b, 1))
    for m in range(2):
        mf(UM(m), FAM(b, m), FB(b, 2))
    return r

extra = []
for t in range(9):
    extra.append([Ins(f"s_add_u32 m0, s{sM08}, {t*2048}"), Ins(f"s_mov_b32 s{sT0}, {t*128}"),
                  Ins(f"buffer_load_dwordx4 v{vV8}, {srd(sSRD_C8)}, s{sT0} offen lds", "c8")])
xs = []
for s in range(5):
    vo = [vXS0, vXS1, vXS0, vXS1, vXS8][s]
    so = sXSO + (s >> 1 if s < 4 else 0)
    xs.append([Ins(f"s_mul_i32 s{sT0}, s{sW}, 5120"), Ins(f"s_add_u32 m0, s{sT0}, {L_XS + s*1024}"),
               Ins(f"buffer_load_dwordx4 v{vo}, {srd(sSRD_X)}, s{so} offen lds", "xs")])
extra = xs + extra

if PROF: E('s_mov_b32 s74, s92\ns_mov_b32 s75, s94')
stamp()
P.wait_vm(["st0", "clr"])
E("s_barrier")
stamp()
E(f"""
s_lshr_b32 s{sT0}, s2, 3
s_and_b32 s{sT0}, s{sT0}, 15
s_lshl_b32 s{sT1}, s{sHD}, 5
s_add_u32 s{sT0}, s{sT0}, s{sT1}
s_lshl_b32 s{sT0}, s{sT0}, 2
s_add_u32 s{sT0}, s{sT0}, 64
v_mov_b32 v{vT+16}, s{sT0}
v_mov_b32 v{vT+17}, 0x7ffffff0
v_cmp_eq_u32 vcc, 0, v0
v_cndmask_b32 v{vT+16}, v{vT+17}, v{vT+16}, vcc
v_mov_b32 v{vT+17}, 1
buffer_atomic_add v{vT+17}, v{vT+16}, {srd(sSRD_DBG)}, 0 offen sc1
""", tag="cnt")
P.add(g1_reads(0))
Kq = list(K)
pend_dma = []
for n in range(18):
    kc = n >> 1
    side = []
    if n & 1:
        P.wait_ds()
        if kc + 1 <= 8:
            P.wait_vm(f"st{kc+1}")
            E("s_barrier")
        if kc + 3 <= 8:
            pend_dma = dma_stage(kc % 3, f"st{kc+3}")
        elif kc + 3 == 9:
            pend_dma = extra[:7]
        elif kc + 3 == 10:
            pend_dma = extra[7:]
    rd = g1_reads(n + 1) if n + 1 < 18 else []
    mf = g1_mfma(n)
    body = []
    nd = (len(pend_dma) + 1) // 2 if n & 1 else len(pend_dma)
    dm = pend_dma[:nd]; pend_dma = pend_dma[nd:]
    for gi, m in enumerate(mf):
        body.append(m)
        if gi < len(rd): body.append(rd[gi])
        if gi % 4 == 1 and dm: body += dm.pop(0)
        nk = 1 if gi < len(rd) else 2
        for _ in range(nk):
            if Kq and n >= 1: body.append(Kq.pop(0))
    for d in dm: body += d
    P.add(body)
P.add(Kq)
stamp()

def U(s): return (UR(s >> 1) + 2 * (s & 1), UI(s >> 1) + 2 * (s & 1))
def UMs(s): return UM(s >> 1) + 2 * (s & 1)
eA, eB, eC, eD = vT, vT + 2, vT + 4, vT + 6
mE, mT = vT + 8, vT + 10
p1 = []
er, ei = U(0)
ta, tb = eA, eB
for s in range(1, 16):
    ur, ui = U(s)
    p1 += [pkfma(ta, cL1, er, ur, "l"), pkfma(tb, cL1, ei, ui, "l"), pkfma(tb, cL1, er, tb, "h"), pkfma(ta, cL1, ei, ta, "h", neg0="both")]
    er, ei = ta, tb
    ta, tb = (eC, eD) if ta == eA else (eA, eB)
ER, EI = er, ei
pm = []
me = UMs(0)
mt = mE
for s in range(1, 4):
    pm += [pkfma(mt, cLM, me, UMs(s), "l"), f"v_fmac_f32_dpp v{mt}, v{me}, v{cLM+1} {DPP8}", f"v_fmac_f32_dpp v{mt+1}, v{me+1}, v{cLM+1} {DPP8}"]
    me = mt
    mt = mT if mt == mE else mE
ME = me
gM, gM2 = vT + 12, vT + 13
pm += [f"v_mul_f32 v{gM}, v{cPMa}, v{ME}", f"v_fmac_f32_dpp v{gM}, v{ME}, v{cPMb} {DPP8}",
       f"v_fmac_f32 v{gM}, v{cPMa+1}, v{ME+1}", f"v_fmac_f32_dpp v{gM}, v{ME+1}, v{cPMb+1} {DPP8}",
       f"v_mov_b32 v{gM2}, v{gM}", "s_nop 0", "s_nop 0", f"v_permlane16_swap_b32 v{gM}, v{gM2}", f"v_add_f32 v{gM}, v{gM}, v{gM2}"]
P.add(interleave(p1, pm, start=2, every=3))
GR, GI = ta, tb
P.add([pkmul(GR, cPAr, ER), pkmul(GI, cPAr, EI), pkfma(GR, cPAi, EI, GR, neg0="both"), pkfma(GI, cPAi, ER, GI)])
E(f"""
v_add_f32 v{GR}, v{GR}, v{GR+1}
v_add_f32 v{GI}, v{GI}, v{GI+1}
v_permlane16_swap_b32 v{GR}, v{GI}
v_add_f32 v{GR}, v{GR}, v{GI}
v_permlane32_swap_b32 v{GR}, v{gM}
v_add_f32 v{GR}, v{GR}, v{gM}
v_min_u32 v{GR}, -2, v{GR}
s_mov_b32 exec_hi, 0xffff
""")
E(f"buffer_store_dword v{GR}, v{vPUB}, {srd(sSRD_WS)}, 0 offen sc1", tag="pub")
E("s_mov_b32 exec_hi, -1")
stamp()

cchk = vT + 26
E(f"""
v_lshlrev_b32 v{cchk}, 2, v{vI}
s_lshl_b32 s{sT0}, s{sHD}, 7
s_add_u32 s{sT0}, s{sT0}, 64
v_add_u32 v{vT+25}, s{sT0}, v{cchk}
""")
mP = vT + 14
scr = vT + 16
E(pkmul(mP, cCM, ME, "l"))
E(f"""
v_fmac_f32_dpp v{mP}, v{ME}, v{cCM+1} {DPP8}
v_fmac_f32_dpp v{mP+1}, v{ME+1}, v{cCM+1} {DPP8}
v_lshlrev_b32 v{scr}, 3, v0
v_add_u32 v{scr}, {L_SCR}, v{scr}
ds_write_b64 v{scr}, {v2(mP)}
""")
P.wait_vm(["c8", "xs"])
P.wait_ds()
E("s_barrier")
E(f"""
s_mul_i32 s{sT0}, s{sE}, 144
s_lshl_b32 s{sT1}, s{sW}, 5
s_add_u32 s{sT0}, s{sT0}, s{sT1}
s_mul_i32 s{sT0}, s{sT0}, {ROWB}
s_add_u32 s{sT0}, s{sT0}, 4096
v_add3_u32 v{vC[0]}, v{kA8}, v{kSW}, s{sT0}
s_add_u32 s{sT0}, s{sT0}, {8*ROWB-1024}
v_add3_u32 v{vC[1]}, v{kA8}, v{kSW4}, s{sT0}
v_add_u32 v{vC[2]}, {16*ROWB-2048}, v{vC[0]}
v_add_u32 v{vC[3]}, {16*ROWB-2048}, v{vC[1]}
v_add_u32 v{vRC[0]}, s{sM0C}, v{vRA[0]}
v_add_u32 v{vRC[1]}, s{sM0C}, v{vRA[1]}
v_add_u32 v{vR8[0]}, {L_C8}, v{vRA[0]}
v_add_u32 v{vR8[1]}, {L_C8}, v{vRA[1]}
""")
def c_dma(pc):
    sr = sSRD_CR if pc < 9 else sSRD_CI
    g = [[Ins(f"s_add_u32 m0, s{sM0C}, {(pc%6)*4096}"), Ins(f"s_mov_b32 s{sKB}, {(pc%9)*128}"),
          Ins(f"buffer_load_dwordx4 v{vC[0]}, {srd(sr)}, s{sKB} offen lds", f"c{pc}_")]]
    for kk in (1, 2, 3):
        g.append([Ins(f"buffer_load_dwordx4 v{vC[kk]}, {srd(sr)}, s{sKB} offen offset:{1024*kk} lds", f"c{pc}_")])
    return g
def c_read(pc):
    r = [("wvm", f"c{pc}_")]
    for s in range(2):
        for t in range(2):
            r.append(f"ds_read_b128 {CF(2*pc+s, t)}, v{vRC[s]} offset:{(pc%6)*4096+t*2048}")
    return r
E(f"buffer_load_dword v{cchk}, v{vT+25}, {srd(sSRD_DBG)}, 0 offen sc1", tag="cchk")
for pc in range(6): P.add(flat(c_dma(pc)))

e0, e1, e2, e3 = vT + 16, vT + 18, vT + 20, vT + 22
rdA = vT + 24
E(f"""
v_lshlrev_b32 v{rdA}, 3, v{vL}
v_add_u32 v{rdA}, {L_SCR}, v{rdA}
ds_read_b64 {v2(e0)}, v{rdA}
ds_read_b64 {v2(e1)}, v{rdA} offset:512
ds_read_b64 {v2(e2)}, v{rdA} offset:1024
ds_read_b64 {v2(e3)}, v{rdA} offset:1536
""")
def mx_axpy(dst, cst, x):
    return [pkfma(dst, cst, x, dst, "l"), f"v_fmac_f32_dpp v{dst}, v{x}, v{cst+1} {DPP8}", f"v_fmac_f32_dpp v{dst+1}, v{x+1}, v{cst+1} {DPP8}"]
def mx_axpy1(dst, cst, x):
    return [f"v_fmac_f32 v{dst}, v{cst}, v{x}", f"v_fmac_f32_dpp v{dst}, v{x}, v{cst+1} {DPP8}"]
P.add([pkmul(GR, cC1, ER, "l"), pkmul(GI, cC1, EI, "l"), pkfma(GR, cC1, EI, GR, "h", neg0="both"), pkfma(GI, cC1, ER, GI, "h")])
Fr, Fi, Yr, Yi = ER, EI, ER + 1, EI + 1
E(f"""
v_fma_f32 v{Fr}, v{cMU}, v{GR}, v{GR+1}
v_fma_f32 v{Fi}, v{cMU}, v{GI}, v{GI+1}
v_fma_f32 v{Fr}, -v{cMU+1}, v{GI}, v{Fr}
v_fma_f32 v{Fi}, v{cMU+1}, v{GR}, v{Fi}
v_mov_b32 v{Yr}, v{Fr}
v_mov_b32 v{Yi}, v{Fi}
v_permlane16_swap_b32 v{Fr}, v{Yr}
v_permlane16_swap_b32 v{Fi}, v{Yi}
v_fma_f32 v{Yr}, v{cNU}, v{Fr}, v{Yr}
v_fma_f32 v{Yi}, v{cNU}, v{Fi}, v{Yi}
v_fma_f32 v{Yr}, -v{cNU+1}, v{Fi}, v{Yr}
v_fma_f32 v{Yi}, v{cNU+1}, v{Fr}, v{Yi}
v_mov_b32 v{GR+1}, v{Yr}
v_mov_b32 v{GI+1}, v{Yi}
v_permlane32_swap_b32 v{Yr}, v{GR+1}
v_permlane32_swap_b32 v{Yi}, v{GI+1}
""")
BD = [CFV, CFV + 4, CFV + 8]
XF = [CFV + 12, CFV + 16, CFV + 20, CFV + 24, CFV + 28]
kq, ksh = gM, gM2
E(f"""
v_lshrrev_b32 v{kq}, 1, v{vI}
v_lshlrev_b32 v{ksh}, 2, v{vQ}
v_sub_u32 v{kq}, v{kq}, v{ksh}
v_and_b32 v{ksh}, 1, v{vI}
v_lshlrev_b32 v{ksh}, 4, v{ksh}
v_lshlrev_b32 v{pD}, v{ksh}, v{pD}
v_lshlrev_b32 v{pD+1}, v{ksh}, v{pD+1}
v_lshlrev_b32 v{pD+2}, v{ksh}, v{pD+2}
""")
for n in range(4):
    E(f"""
    v_cmp_eq_u32 vcc, {n}, v{kq}
    v_cndmask_b32 v{BD[0]+n}, 0, v{pD}, vcc
    v_cndmask_b32 v{BD[2]+n}, 0, v{pD+2}, vcc
    v_cmp_eq_u32 vcc, {n-8}, v{kq}
    v_cndmask_b32 v{BD[1]+n}, 0, v{pD+1}, vcc
    """)
E(f"""
v_lshlrev_b32 v{kq}, 6, v{vI}
v_lshl_add_u32 v{kq}, v{vQ}, 4, v{kq}
s_mul_i32 s{sT0}, s{sW}, 5120
s_add_u32 s{sT0}, s{sT0}, {L_XS}
v_add_u32 v{kq}, s{sT0}, v{kq}
""")
for s in range(5):
    E(f"ds_read_b128 {v4(XF[s])}, v{kq} offset:{s*1024}")
E(f"""
v_mul_f32 v{cLOCR}, v{cBQ}, v{Fr}
v_mul_f32 v{cLOCI}, v{cBQ}, v{Fi}
v_fma_f32 v{cLOCR}, v{cAQ}, v{Yr}, v{cLOCR}
v_fma_f32 v{cLOCI}, v{cAQ}, v{Yi}, v{cLOCI}
v_fma_f32 v{cLOCR}, -v{cAQ+1}, v{Yi}, v{cLOCR}
v_fma_f32 v{cLOCI}, v{cAQ+1}, v{Yr}, v{cLOCI}
v_fma_f32 v{cLOCR+1}, v{cMU}, v{cLOCR}, v{GR}
v_fma_f32 v{cLOCI+1}, v{cMU}, v{cLOCI}, v{GI}
v_fma_f32 v{cLOCR+1}, -v{cMU+1}, v{cLOCI}, v{cLOCR+1}
v_fma_f32 v{cLOCI+1}, v{cMU+1}, v{cLOCR}, v{cLOCI+1}
""")
for s in range(4):
    for t in range(2):
        E(f"v_mfma_f32_16x16x32_bf16 {v4(ACC2(s,t))}, {v4(XF[s])}, {v4(BD[t])}, 0")
E(f"v_mfma_f32_16x16x32_bf16 {v4(ACC8)}, {v4(XF[4])}, {v4(BD[2])}, 0")
P.add(mx_axpy(e1, cMKA, e0)); P.add(mx_axpy(e2, cMKA, e1)); P.add(mx_axpy(e3, cMKA, e2))
LOCM = mP
E(f"v_mov_b32 v{LOCM}, 0\nv_mov_b32 v{LOCM+1}, 0")
for w, src in ((1, e0), (2, e1), (3, e2)):
    E(f"""
    s_cmp_eq_u32 s{sW}, {w}
    s_cselect_b64 vcc, -1, 0
    v_cndmask_b32 v{LOCM}, v{LOCM}, v{src}, vcc
    v_cndmask_b32 v{LOCM+1}, v{LOCM+1}, v{src+1}, vcc
    """)
mX, mY, mS = e0, e0 + 1, e1
P.add(mx_axpy1(e3 + 1, cMMU, e3))
E(f"""
v_mov_b32 v{mX}, v{e3+1}
v_mov_b32 v{mY}, v{e3+1}
v_permlane16_swap_b32 v{mX}, v{mY}
""")
P.add(mx_axpy1(mY, cMNU, mX))
E(f"""
v_mov_b32 v{e2}, v{mY}
v_permlane32_swap_b32 v{mY}, v{e2}
v_mul_f32 v{mS}, v{cBQ}, v{mX}
""")
P.add(mx_axpy1(mS, cMAQ, mY))
E(f"v_mov_b32 v{mS+1}, v{e3}")
P.add(mx_axpy1(mS + 1, cMMU, mS))
P.add(mx_axpy(LOCM, cMKW, mS))
E(f"v_mov_b32 v{cAQ}, v{LOCM}\nv_mov_b32 v{cAQ+1}, v{LOCM+1}")
LOCM = cAQ
tp = vT
for s in range(16):
    ur, ui = U(s)
    tt = tp + 2 * (s & 1)
    P.add([pkmul(tt, cC1, ui, "h"), pkmul(ui, cC1, ui, "l"), pkfma(ui, cC1, ur, ui, "h"),
           f"v_pk_fma_f32 {v2(ur)}, {v2(cC1)}, {v2(ur)}, {v2(tt)} op_sel:[0,0,0] op_sel_hi:[0,1,1] neg_lo:[0,0,1] neg_hi:[0,0,1]"])
for s in range(4):
    um = UMs(s)
    tt = tp + 2 * (s & 1)
    P.add([f"v_mul_f32_dpp v{tt}, v{um}, v{cCM+1} {DPP8}", f"v_mul_f32_dpp v{tt+1}, v{um+1}, v{cCM+1} {DPP8}", pkfma(um, cCM, um, tt, "l")])
stamp()
E(f"s_mov_b32 s{sCNT}, 0")
E(f"v_cmp_gt_u32 vcc, 8, v{cchk}")
E("s_cbranch_vccz L_clr_ok")
P.label("L_clr_loop")
E(f"""
s_sleep 2
buffer_load_dword v{cchk}, v{vT+25}, {srd(sSRD_DBG)}, 0 offen sc1
s_add_u32 s{sCNT}, s{sCNT}, 1
s_cmp_gt_u32 s{sCNT}, {SPIN_MAX}
s_cbranch_scc1 L_clr_ok
s_waitcnt vmcnt(0)
v_cmp_gt_u32 vcc, 8, v{cchk}
s_cbranch_vccnz L_clr_loop
""")
P.label("L_clr_ok")
gA = [vT + 2 * kk for kk in range(4)]
gB = [vT + 8 + 4 * kk for kk in range(4)]
gX = vT + 24
E(f"s_mov_b32 s{sCNT}, 0")
P.label("L_g_loop")
for kk in range(4):
    E(f"buffer_load_dwordx2 {v2(gA[kk])}, v{vG1[kk]}, {srd(sSRD_AG)}, 0 offen sc1")
    E(f"buffer_load_dwordx4 {v4(gB[kk])}, v{vG2[kk]}, {srd(sSRD_AG)}, 0 offen sc1")
E(f"""
s_add_u32 s{sCNT}, s{sCNT}, 1
s_cmp_gt_u32 s{sCNT}, {SPIN_MAX}
s_waitcnt vmcnt(0)
""")
words = list(range(vT, vT + 24))
E(f"v_max3_u32 v{gX}, v{words[0]}, v{words[1]}, v{words[2]}")
E(f"v_max3_u32 v{gX+1}, v{words[3]}, v{words[4]}, v{words[5]}")
for n in range(6, 24, 4):
    E(f"v_max3_u32 v{gX}, v{gX}, v{words[n]}, v{words[n+1]}")
    if n + 3 < 24: E(f"v_max3_u32 v{gX+1}, v{gX+1}, v{words[n+2]}, v{words[n+3]}")
E(f"""
v_max_u32 v{gX}, v{gX}, v{gX+1}
v_cmp_eq_u32 vcc, -1, v{gX}
s_cbranch_scc1 L_g_ok
s_cbranch_vccnz L_g_loop
""")
P.label("L_g_ok")
stamp()
def chorner(T, Aa, R):
    return [pkfma(Aa, R, T, Aa, "l"), pkfma(Aa, R, T, Aa, "h", "s", neg0="lo")]
ga = []
for kk in (2, 1, 0): ga += chorner(gA[kk + 1], gA[kk], cR4)
ga += [pkmul(gA[1], cRQ, gA[0], "l"), pkfma(gA[1], cRQ, gA[0], gA[1], "h", "s", neg0="lo")]
gb = [f"v_pk_add_f32 {v2(gB[kk])}, {v2(gB[kk])}, {v2(gB[kk]+2)}" for kk in (3, 2, 1, 0)]
for kk in (2, 1, 0): gb += chorner(gB[kk + 1], gB[kk], cMR4)
gb += [pkmul(gB[1], cMRQ, gB[0], "l"), pkfma(gB[1], cMRQ, gB[0], gB[1], "h", "s", neg0="lo")]
P.add(interleave(gb, ga, start=3, every=1))
Ur, Ui, Vr, Vi = gA[1], gA[1] + 1, gB[1], gB[1] + 1
HR, HI, MR, MI = gA[2], gA[2] + 1, gA[3], gA[3] + 1
E(f"""
v_permlane16_swap_b32 v{Ur}, v{Ui}
v_permlane16_swap_b32 v{Vr}, v{Vi}
v_add_f32 v{Ur}, v{Ur}, v{Ui}
v_add_f32 v{Vr}, v{Vr}, v{Vi}
v_permlane32_swap_b32 v{Ur}, v{Vr}
v_add_f32 v{HR}, v{Ur}, v{Vr}
v_add_f32 v{MR}, v{Ur}, v{Vr}
v_permlane32_swap_b32 v{HR}, v{MR}
v_mov_b32 v{HI}, v{HR}
v_add_f32_dpp v{MI}, v{MR}, v{MR} {DPP8}
v_add_f32_dpp v{MR}, v{MR}, v{MR} {DPP8}
v_permlane16_swap_b32 v{HR}, v{HI}
v_permlane16_swap_b32 v{MR}, v{MI}
""")
P.add([pkfma(cLOCR, cGMr, HR, cLOCR, "n", "l"), pkfma(cLOCI, cGMr, HR, cLOCI, "n", "h"),
       pkfma(cLOCR, cGMi, HR, cLOCR, "n", "h", neg0="both"), pkfma(cLOCI, cGMi, HR, cLOCI, "n", "l"),
       pkfma(LOCM, cMX, MR, LOCM, "n", "l"), pkfma(LOCM, cMY, MR, LOCM, "n", "h")])
hsoff = {0: "0", 1: f"s{sK2}"}
hsoffI = {0: f"s{sK1}", 1: f"s{sK3}"}
p2 = []
hr, hi = cLOCR, cLOCI
for s in range(16):
    ur, ui = U(s)
    p2 += [pkfma(ur, cL1, hr, ur, "l"), pkfma(ui, cL1, hi, ui, "l"), pkfma(ur, cL1, hi, ur, "h", neg0="both"), pkfma(ui, cL1, hr, ui, "h")]
    hr, hi = ur, ui
    if s % 4 == 3:
        mp = s >> 2
        A_, B_ = UR(2 * mp), UR(2 * mp + 1)
        p2 += [f"v_cvt_pk_bf16_f32 v{A_}, v{A_}, v{A_+1}", f"v_cvt_pk_bf16_f32 v{A_+1}, v{A_+2}, v{A_+3}",
               f"v_cvt_pk_bf16_f32 v{A_+2}, v{B_}, v{B_+1}", f"v_cvt_pk_bf16_f32 v{A_+3}, v{B_+2}, v{B_+3}",
               Ins(f"buffer_store_dwordx4 {v4(A_)}, v{vHS}, {srd(sSRD_WS)}, {hsoff[mp>>1]} offen offset:{(mp&1)*1024} sc1", "hst")]
        A_, B_ = UI(2 * mp), UI(2 * mp + 1)
        p2 += [f"v_cvt_pk_bf16_f32 v{A_}, -v{A_}, -v{A_+1}", f"v_cvt_pk_bf16_f32 v{A_+1}, -v{A_+2}, -v{A_+3}",
               f"v_cvt_pk_bf16_f32 v{A_+2}, -v{B_}, -v{B_+1}", f"v_cvt_pk_bf16_f32 v{A_+3}, -v{B_+2}, -v{B_+3}",
               Ins(f"buffer_store_dwordx4 {v4(A_)}, v{vHS}, {srd(sSRD_WS)}, {hsoffI[mp>>1]} offen offset:{(mp&1)*1024} sc1", "hst")]
pm = []
hm = LOCM
for s in range(4):
    um = UMs(s)
    pm += mx_axpy(um, cLM, hm)
    hm = um
A_, B_ = UM(0), UM(1)
sgm = vT
pm += [f"v_cmp_lt_u32 vcc, 7, v{vI}", f"v_mov_b32 v{sgm}, 0x80008000", "s_nop 0", f"v_cndmask_b32 v{sgm}, 0, v{sgm}, vcc",
       f"v_cvt_pk_bf16_f32 v{A_}, v{A_}, v{A_+1}", f"v_cvt_pk_bf16_f32 v{A_+1}, v{A_+2}, v{A_+3}",
       f"v_cvt_pk_bf16_f32 v{A_+2}, v{B_}, v{B_+1}", f"v_cvt_pk_bf16_f32 v{A_+3}, v{B_+2}, v{B_+3}"]
pm += [f"v_xor_b32 v{A_+n}, v{sgm}, v{A_+n}" for n in range(4)]
pm += [Ins(f"buffer_store_dwordx4 {v4(A_)}, v{vHSM}, {srd(sSRD_WS)}, 0 offen sc1", "hst")]
P.add(interleave(p2, pm, start=1, every=3))
stamp()
for pc in range(6): P.add(c_read(pc))
P.wait_ds()
for pc in range(6, 12): P.add(flat(c_dma(pc)))
P.wait_vm("hst")
E(f"""
v_mov_b32 v{vT}, 1
s_mov_b32 exec_lo, 0
s_mov_b32 exec_hi, 0x10000
""")
E(f"buffer_store_dword v{vT}, v{vPUB}, {srd(sSRD_WS)}, 0 offen sc1", tag="flag")
E("s_mov_b64 exec, -1")
stamp()
for ks in range(24):
    E(f"ds_read_b128 {v4(C8V(ks))}, v{vR8[ks&1]} offset:{(ks>>1)*2048}")
w1, w2 = vT + 1, vT + 2
E(f"""
v_lshrrev_b32 v{w1}, 1, v{vQ}
v_lshlrev_b32 v{w1}, 11, v{w1}
v_lshrrev_b32 v{w2}, 2, v{vI}
v_lshl_add_u32 v{w1}, v{w2}, 4, v{w1}
v_bfe_u32 v{w2}, v{vI}, 1, 1
v_lshl_add_u32 v{w1}, v{w2}, 6, v{w1}
v_and_b32 v{w2}, 1, v{vQ}
v_lshl_add_u32 v{w1}, v{w2}, 7, v{w1}
v_and_b32 v{w2}, 1, v{vI}
v_lshl_add_u32 v{w1}, v{w2}, 9, v{w1}
v_lshl_add_u32 v{w1}, v{w2}, 3, v{w1}
s_and_b32 s{sT0}, s{sW}, 1
s_lshl_b32 s{sT0}, s{sT0}, 3
s_lshr_b32 s{sT1}, s{sW}, 1
s_lshl_b32 s{sT1}, s{sT1}, 10
s_or_b32 s{sT0}, s{sT0}, s{sT1}
v_xor_b32 v{vRH[0]}, s{sT0}, v{w1}
v_xor_b32 v{vRH[1]}, 8, v{vRH[0]}
v_xor_b32 v{vRH[2]}, 0x400, v{vRH[0]}
v_xor_b32 v{vRH[3]}, 0x408, v{vRH[0]}
v_and_b32 v{w2}, 1, v{vQ}
s_and_b32 s{sT0}, s{sW}, 1
v_xor_b32 v{w2}, s{sT0}, v{w2}
v_lshlrev_b32 v{w1}, 5, v{vQ}
v_lshl_add_u32 v{vO[0]}, v{w2}, 1, v{w1}
v_xor_b32 v{vO[1]}, 2, v{vO[0]}
v_mul_u32_u24 v{vO[0]}, 4608, v{vO[0]}
v_mul_u32_u24 v{vO[1]}, 4608, v{vO[1]}
s_mul_i32 s{sT0}, s{sC}, {128*4608}
s_mul_i32 s{sT1}, s{sHD}, 2304
s_add_u32 s{sT0}, s{sT0}, s{sT1}
s_mul_i32 s{sT1}, s{sE}, 576
s_add_u32 s{sT0}, s{sT0}, s{sT1}
v_lshlrev_b32 v{w1}, 2, v{vI}
v_add_u32 v{w1}, s{sT0}, v{w1}
v_add_u32 v{vO8}, v{vO[0]}, v{w1}
v_add_u32 v{vO8}, 512, v{vO8}
s_lshl_b32 s{sT1}, s{sW}, 7
v_add3_u32 v{vO[0]}, v{vO[0]}, v{w1}, s{sT1}
v_add3_u32 v{vO[1]}, v{vO[1]}, v{w1}, s{sT1}
""")
for pc in range(6, 12): P.add(c_read(pc))
P.wait_ds()
for pc in range(12, 18): P.add(flat(c_dma(pc)))
for pc in range(12, 18): P.add(c_read(pc))
P.wait_ds()
stamp()
vHD, vFA, vFD = vT + 8, vT + 9, vT + 10
E(f"""
v_lshlrev_b32 v{vHD}, 4, v{vL}
v_and_b32 v{vFA}, 31, v{vL}
v_lshlrev_b32 v{vFA}, 2, v{vFA}
v_add_u32 v{vFA}, s{sFLAGB}, v{vFA}
s_mov_b32 s{sCNT}, 0
s_lshl_b32 s{sT1}, s{sW}, 12
s_add_u32 s{sHSRC}, s{sHSRC}, s{sT1}
""")
P.label("L_f_loop")
E(f"""
buffer_load_dword v{vFD}, v{vFA}, {srd(sSRD_WS)}, 0 offen sc1
s_add_u32 s{sCNT}, s{sCNT}, 1
s_cmp_gt_u32 s{sCNT}, {SPIN_MAX}
s_waitcnt vmcnt(0)
v_cmp_ne_u32 vcc, 1, v{vFD}
s_cbranch_scc1 L_f_ok
s_cbranch_vccnz L_f_loop
""")
P.label("L_f_ok")
E("s_barrier")
stamp()
def h_dma(g):
    r = [[Ins(f"s_add_u32 m0, s{sT1}, {g*16384}"), Ins(f"s_add_u32 s{sKB}, s{sHSRC}, {g*16384}"),
          Ins(f"buffer_load_dwordx4 v{vHD}, {srd(sSRD_WS)}, s{sKB} offen sc1 lds", f"h{g}")]]
    for kk in (1, 2, 3):
        r.append([Ins(f"buffer_load_dwordx4 v{vHD}, {srd(sSRD_WS)}, s{sKB} offen offset:{1024*kk} sc1 lds", f"h{g}")])
    return r
def g2_reads(ks):
    b = ks & 1
    r = []
    if ks in (16, 32):
        r.append([Ins(f"v_add_u32 v{vRH[s]}, 0x10000, v{vRH[s]}") for s in range(4)])
    off = (ks % 16) * 4096
    for s in range(4):
        for rd in range(2):
            r.append(f"ds_read_b64_tr_b16 {v2(HF(b,s)+2*rd)}, v{vRH[s]} offset:{off+256*rd}")
    if ks >= 24:
        r.append(f"ds_read_b128 {v4(C8B(b))}, v{vR8[ks&1]} offset:{(ks>>1)*2048}")
    return r
def g2_mfma(ks):
    b = ks & 1
    r = []
    for s in range(4):
        for t in range(2):
            r.append(f"v_mfma_f32_16x16x32_bf16 {v4(ACC2(s,t))}, {v4(HF(b,s))}, {CF(ks,t)}, {v4(ACC2(s,t))}")
    c8 = v4(C8V(ks)) if ks < 24 else v4(C8B(b))
    r.append(f"v_mfma_f32_16x16x32_bf16 {v4(ACC8)}, {v4(HF(b,0))}, {c8}, {v4(ACC8)}")
    return r
HPRE = 3
for g in range(HPRE): P.add(flat(h_dma(g)))
P.wait_vm("h0")
E("s_barrier")
P.add(flat(g2_reads(0)))
pend = []
for ks in range(36):
    g = ks >> 2
    if ks % 4 == 0 and g + HPRE < 9: pend = h_dma(g + HPRE)
    if ks % 4 == 3 and g + 1 < 9:
        P.wait_vm(f"h{g+1}")
        E("s_barrier")
    rd = g2_reads(ks + 1) if ks + 1 < 36 else []
    body = []
    for gi, m in enumerate(g2_mfma(ks)):
        body.append(m)
        for _ in range(2 if gi == 0 else 1):
            if rd:
                x = rd.pop(0); body += x if isinstance(x, list) else [x]
        if gi in (3, 7) and pend and ks % 4 < 3: body += pend.pop(0)
    for x in rd: body += x if isinstance(x, list) else [x]
    P.add(body)
stamp()
for s in range(4):
    for r in range(4):
        for t in range(2):
            E(f"buffer_store_dword v{ACC2(s,t)+r}, v{vO[s&1]}, {srd(sSRD_OUT)}, s{sSO+4*(s>>1)+r} offen offset:{64*t}")
for r in range(4):
    E(f"buffer_store_dword v{ACC8+r}, v{vO8}, {srd(sSRD_OUT)}, s{sSO+r} offen")
if PROF:
    E("s_waitcnt vmcnt(0)")
    E("s_memtime s[64:65]")
    E("s_memrealtime s[66:67]")
    E("s_waitcnt lgkmcnt(0)")
    E(f"v_mov_b32 v{vT}, 0")
    PROFW = [("s75", None), ("s66", None)] + [(f"s{sSTAMP+2*n}", 1) for n in range(nstamp[0])] + [("s64", 1)]
    for n, (sr, sub) in enumerate(PROFW):
        if sub: E(f"s_sub_u32 {sr}, {sr}, s74")
        E(f"v_writelane_b32 v{vT}, {sr}, {n}")
    E(f"s_getreg_b32 s{sT0}, hwreg(HW_REG_XCC_ID)")
    E(f"v_writelane_b32 v{vT}, s{sT0}, 15")
    E(f"""
    s_lshl_b32 s{sT0}, s2, 8
    s_lshl_b32 s{sT1}, s{sW}, 6
    s_add_u32 s{sT0}, s{sT0}, s{sT1}
    s_add_u32 s{sT0}, s{sT0}, {WS_PROF}
    v_lshlrev_b32 v{vT+1}, 2, v{vL}
    s_mov_b32 exec_hi, 0
    s_mov_b32 exec_lo, 0xffff
    buffer_store_dword v{vT}, v{vT+1}, {srd(sSRD_WS)}, s{sT0} offen
    """)
    if args.dbgprof:
        E(f"""
        s_not_b32 s75, s75
        v_writelane_b32 v{vT}, s75, 0
        s_cmp_lg_u32 s{sW}, 0
        s_cbranch_scc1 L_end
        buffer_atomic_umax v{vT}, v{vT+1}, {srd(sSRD_DBG)}, 0 offen sc1
        """)
P.label("L_end")
E("s_endpgm")
P.label("L_code_end")

hdr = open("concat_heads__ssm_conv_s5__ssm_conv_s5__prompt.s.ref").read().split("\n")
head = [l for l in hdr if l.startswith(";") and "@launch" not in l and "Override" not in l and "grid=ceil" not in l]
txt = "\n".join(head) + f"\n; @launch grid=(256,1,1) block=(256,1,1) lds={LDS_TOTAL}\n"
txt += f""".amdgcn_target "amdgcn-amd-amdhsa--gfx950"
.text
.globl {NAME}
.p2align 8
.type {NAME},@function
.set CODE_LAST, @CODELAST@
{NAME}:
"""
txt += P.finalize()
txt += f"""
.section .rodata,"a"
.p2align 6
.amdhsa_kernel {NAME}
  .amdhsa_next_free_vgpr 512
  .amdhsa_next_free_sgpr 102
  .amdhsa_accum_offset 256
  .amdhsa_group_segment_fixed_size 0
  .amdhsa_kernarg_size 168
  .amdhsa_user_sgpr_count 2
  .amdhsa_user_sgpr_kernarg_segment_ptr 1
  .amdhsa_system_sgpr_workgroup_id_x 1
.end_amdhsa_kernel
"""
import subprocess, re, tempfile, os
def code_last(t):
    with tempfile.TemporaryDirectory() as d:
        open(d + "/a.s", "w").write(t.replace("@CODELAST@", "0x1234"))
        subprocess.run(["clang", "-x", "assembler", "-target", "amdgcn-amd-amdhsa", "-mcpu=gfx950", "-c", d + "/a.s", "-o", d + "/a.o"], check=True)
        o = subprocess.run(["llvm-objdump", "-t", d + "/a.o"], capture_output=True, text=True).stdout
        sym = {}
        for l in o.splitlines():
            m = re.match(r"([0-9a-f]+) .* (L_\w+)$", l)
            if m: sym[m.group(2)] = int(m.group(1), 16)
        return sym["L_code_end"] - sym["L_pc"] - 4
cl = code_last(txt)
assert cl < 32768
txt = txt.replace("@CODELAST@", str(cl))
open(args.o, "w").write(txt)
print("code bytes", cl)
```

```python
import sys, argparse
from asmlib import Prog, Ins, interleave

ap = argparse.ArgumentParser()
ap.add_argument("--prof", action="store_true")
ap.add_argument("--dbgprof", action="store_true")
ap.add_argument("--amp", type=int, default=-1)
ap.add_argument("-o", default="concat_heads__ssm_conv_s5__ssm_conv_s5__prompt.s")
args = ap.parse_args()
PROF = args.prof or args.dbgprof or args.amp >= 0
AMP = args.amp
NAME = "concat_heads__ssm_conv_s5__ssm_conv_s5__prompt_kernel"

ROWB = 1152
XBYTES = 2048 * ROWB
WBYTES = 576 * ROWB
OUTB = 2048 * 4608
WS_FLAG = 0x40000
WS_PROF = 0x50000
WS_H = 0x100000
WS_SIZE = 0xA00000
HHALF = 147456
SPIN_MAX = 200000

L_X, L_W, L_M = 0, 49152, 98304
L_XS = 104448
L_SCR = 124928
L_C8 = 126976
LDS_TOTAL = 163840

sSRD_X, sSRD_BR, sSRD_BI, sSRD_MX, sSRD_CR, sSRD_CI, sSRD_WS, sSRD_OUT, sSRD_DBG, sSRD_AG, sSRD_C8 = 4, 8, 12, 16, 20, 24, 28, 32, 36, 40, 44
sHD, sC, sJ, sW, sHF, sE, sKB, sT0, sT1, sT2 = 48, 49, 50, 51, 52, 53, 54, 55, 56, 57
sM0X, sM0W, sM0M, sM0C, sM08, sHSRC = 58, 59, 60, 61, 62, 63
sPTR = 64
sSO = 64
sXSO = 72
sMSK = 74
sCNT = 76
sK1, sK2, sK3 = 77, 78, 79
sSTAMP = 80
def srd(b): return f"s[{b}:{b+3}]"

vL, vQ, vI = 1, 2, 3
vX = [4, 5, 6, 7]; vW = [8, 9, 10, 11]; vM = 12
vRA = [13, 14]; vRB = [15, 16]; vRM = [17, 18]; vRAM = [19, 20]
vPUB = 21
vG1 = [22, 23, 24, 25]; vG2 = [26, 27, 28, 29]
vHS, vHSM = 30, 31
UR = lambda m: 32 + 4 * m
UI = lambda m: 64 + 4 * m
UM = lambda m: 96 + 4 * m
cL1 = 104; cC1 = 106; cPAr = 108; cPAi = 110; cR4 = 112; cRQ = 114; cGMr = 116; cGMi = 118; cMU = 120; cNU = 122
cAQ = 124; cBQ = 126
cLM = 128; cCM = 130; cPMa = 132; cPMb = 134; cMR4 = 136; cMRQ = 138; cMX = 140; cMY = 142
cMMU = 144; cMNU = 146; cMKA = 148; cMKW = 150; cMAQ = 152; cSGN = 154
cLOCR = 156; cLOCI = 158
ACC2 = lambda s, t: 160 + 8 * s + 4 * t
ACC8 = 192
CFV = 196
vT = 228
vC = [4, 5, 6, 7]
vRC = [15, 16]
vR8 = [17, 18]
vRH = [8, 9, 10, 11]
vO = [19, 20]; vO8 = 12
C8V = lambda ks: 32 + 4 * ks
HF = lambda b, s: 128 + 16 * b + 4 * s
C8B = lambda b: 228 + 4 * b
def CF(ks, t):
    f = 2 * ks + t
    return f"a[{4*f}:{4*f+3}]" if f < 64 else f"v[{CFV+4*(f-64)}:{CFV+4*(f-64)+3}]"
FA = lambda b, m: 52 * b + 4 * m
FAM = lambda b, m: 52 * b + 32 + 4 * m
FB = lambda b, n: 52 * b + 40 + 4 * n
def v4(r): return f"v[{r}:{r+3}]"
def a4(r): return f"a[{r}:{r+3}]"
def v2(r): return f"v[{r}:{r+1}]"

P = Prog()
E = P.e
nstamp = [0]
def stamp():
    if PROF:
        k = nstamp[0]; nstamp[0] += 1
        assert sSTAMP + 2 * k + 1 <= 101
        if AMP >= 0:
            if AMP == k: E(f"s_memrealtime s[{sSTAMP+2*k}:{sSTAMP+2*k+1}]")
        else:
            E(f"s_memtime s[{sSTAMP+2*k}:{sSTAMP+2*k+1}]")

BCLO = "op_sel:[0,0,0] op_sel_hi:[0,1,1]"
def pkfma(d, s0, s1, s2, sel0="n", sel1="n", neg0=None):
    m = {"n": (0, 1), "l": (0, 0), "h": (1, 1), "s": (1, 0)}
    t = f"v_pk_fma_f32 {v2(d)}, {v2(s0)}, {v2(s1)}, {v2(s2)} op_sel:[{m[sel0][0]},{m[sel1][0]},0] op_sel_hi:[{m[sel0][1]},{m[sel1][1]},1]"
    if neg0 in ("both", "lo"): t += " neg_lo:[1,0,0]"
    if neg0 in ("both", "hi"): t += " neg_hi:[1,0,0]"
    return t
def pkmul(d, s0, s1, sel0="n", sel1="n"):
    m = {"n": (0, 1), "l": (0, 0), "h": (1, 1), "s": (1, 0)}
    return f"v_pk_mul_f32 {v2(d)}, {v2(s0)}, {v2(s1)} op_sel:[{m[sel0][0]},{m[sel1][0]}] op_sel_hi:[{m[sel0][1]},{m[sel1][1]}]"
DPP8 = "row_ror:8 row_mask:0xf bank_mask:0xf"

E(f"""
s_cmp_ge_u32 s2, 256
s_cbranch_scc1 L_end
s_and_b32 s3, s2, 7
s_lshr_b32 s{sT0}, s2, 3
s_and_b32 s{sHD}, s3, 1
s_mul_i32 s{sT1}, s{sHD}, 72
s_load_dwordx16 s[64:79], s[0:1], s{sT1}
s_load_dwordx2 s[80:81], s[0:1], s{sT1} offset:64
s_load_dwordx4 s[84:87], s[0:1], 144
s_load_dwordx2 s[88:89], s[0:1], 160
s_getpc_b64 s[90:91]
""")
P.label("L_pc")
E(f"""
s_lshr_b32 s3, s3, 1
s_lshl_b32 s3, s3, 2
s_lshr_b32 s{sC}, s{sT0}, 3
s_add_u32 s{sC}, s{sC}, s3
s_and_b32 s{sJ}, s{sT0}, 7
s_lshr_b32 s{sHF}, s{sJ}, 2
s_and_b32 s{sE}, s{sJ}, 3
v_lshrrev_b32 v{vT}, 6, v0
v_and_b32 v{vL}, 63, v0
v_readfirstlane_b32 s{sW}, v{vT}
v_lshrrev_b32 v{vQ}, 4, v{vL}
v_and_b32 v{vI}, 15, v{vL}
""")
if PROF:
    E("s_memtime s[92:93]")
    E("s_memrealtime s[94:95]")
E(f"v_lshlrev_b32 v{vT+1}, 7, v0")
E(f"v_min_u32 v{vT+1}, CODE_LAST, v{vT+1}")
E(f"global_load_dword v{vT+27}, v{vT+1}, s[90:91]", tag="cpf")
a_, pos_, sw_, f_ = vT + 2, vT + 3, vT + 4, vT + 5
E(f"""
v_lshrrev_b32 v{a_}, 3, v{vL}
v_and_b32 v{pos_}, 7, v{vL}
v_lshrrev_b32 v{vT+6}, 1, v{a_}
v_xor_b32 v{sw_}, v{pos_}, v{vT+6}
v_lshlrev_b32 v{sw_}, 4, v{sw_}
v_lshrrev_b32 v{f_}, 2, v{a_}
v_lshlrev_b32 v{f_}, 5, v{f_}
v_and_b32 v{vT+7}, 1, v{a_}
v_lshl_add_u32 v{f_}, v{vT+7}, 4, v{f_}
v_and_b32 v{vT+7}, 1, v{vT+6}
v_add_u32 v{f_}, v{f_}, v{vT+7}
v_mul_u32_u24 v{f_}, {ROWB}, v{f_}
v_mul_u32_u24 v{vT+8}, {ROWB}, v{a_}
s_lshl_b32 s{sT0}, s{sC}, 7
s_lshl_b32 s{sT1}, s{sW}, 2
s_add_u32 s{sT0}, s{sT0}, s{sT1}
s_mul_i32 s{sT0}, s{sT0}, {ROWB}
s_add_u32 s{sT0}, s{sT0}, 4096
v_add3_u32 v{vX[0]}, v{f_}, v{sw_}, s{sT0}
v_xor_b32 v{vT+9}, 64, v{sw_}
s_add_u32 s{sT0}, s{sT0}, {64*ROWB-1024}
v_add3_u32 v{vX[1]}, v{f_}, v{vT+9}, s{sT0}
v_add_u32 v{vX[2]}, {2*ROWB-2048}, v{vX[0]}
v_add_u32 v{vX[3]}, {2*ROWB-2048}, v{vX[1]}
s_mul_i32 s{sT0}, s{sJ}, 72
s_lshl_b32 s{sT1}, s{sW}, 4
s_add_u32 s{sT1}, s{sT0}, s{sT1}
s_mul_i32 s{sT2}, s{sT1}, {ROWB}
s_add_u32 s{sT2}, s{sT2}, 4096
v_add3_u32 v{vW[0]}, v{vT+8}, v{sw_}, s{sT2}
s_add_u32 s{sT2}, s{sT2}, {8*ROWB-1024}
v_add3_u32 v{vW[1]}, v{vT+8}, v{vT+9}, s{sT2}
v_subrev_u32 v{vW[2]}, 2048, v{vW[0]}
v_subrev_u32 v{vW[3]}, 2048, v{vW[1]}
""")
E(f"""
v_add_u32 v{vT+10}, s{sT1}, v{vI}
v_lshlrev_b32 v{vT+10}, 1, v{vT+10}
v_and_b32 v{vT+11}, 7, v{vI}
v_add_u32 v{vT+11}, s{sT0}, v{vT+11}
v_lshlrev_b32 v{vT+11}, 1, v{vT+11}
s_and_b32 s{sT1}, s{sW}, 1
s_lshl_b32 s{sT1}, s{sT1}, 2
s_add_u32 s{sT0}, s{sT0}, s{sT1}
s_add_u32 s{sT0}, s{sT0}, 64
s_mul_i32 s{sT0}, s{sT0}, {ROWB}
s_add_u32 s{sT0}, s{sT0}, 4096
s_lshl_b32 s{sT1}, s{sW}, 1
v_add_u32 v{vT+12}, s{sT1}, v{vT+6}
v_xor_b32 v{vT+12}, v{pos_}, v{vT+12}
v_lshlrev_b32 v{vT+12}, 4, v{vT+12}
v_add3_u32 v{vM}, v{vT+8}, v{vT+12}, s{sT0}
s_lshl_b32 s{sM0X}, s{sW}, 12
s_add_u32 s{sM0W}, s{sM0X}, {L_W}
s_lshl_b32 s{sM0M}, s{sW}, 9
s_add_u32 s{sM0M}, s{sM0M}, {L_M}
s_mov_b32 s{sKB}, 0
s_waitcnt lgkmcnt(0)
""")
def mk_srd(d, p, size, shift=0):
    if shift:
        E(f"s_sub_u32 s{d}, s{p}, {shift}\ns_subb_u32 s{d+1}, s{p+1}, 0")
    else:
        E(f"s_mov_b32 s{d}, s{p}\ns_mov_b32 s{d+1}, s{p+1}")
    E(f"s_mov_b32 s{d+2}, {size+shift}\ns_mov_b32 s{d+3}, 0x20000")
mk_srd(sSRD_X, 64, XBYTES, 4096)
mk_srd(sSRD_BR, 70, WBYTES, 4096)
mk_srd(sSRD_BI, 72, WBYTES, 4096)
E(f"""
s_cmp_lt_u32 s{sW}, 2
s_cselect_b32 s{sSRD_MX}, s{sSRD_BR}, s{sSRD_BI}
s_cselect_b32 s{sSRD_MX+1}, s{sSRD_BR+1}, s{sSRD_BI+1}
s_mov_b32 s{sSRD_MX+2}, {WBYTES+4096}
s_mov_b32 s{sSRD_MX+3}, 0x20000
""")
pL = 140
pD = 156
E(f"global_load_ushort v{pL+0}, v{vT+10}, s[66:67]")
E(f"global_load_ushort v{pL+1}, v{vT+10}, s[68:69]")
E(f"global_load_ushort v{pL+2}, v{vT+10}, s[78:79]")
E(f"global_load_ushort v{pL+3}, v{vT+11}, s[66:67] offset:128")
E(f"global_load_ushort v{pL+4}, v{vT+11}, s[68:69] offset:128")
E(f"global_load_ushort v{pL+5}, v{vT+11}, s[78:79] offset:128")

def dma_stage(slot, tag):
    g = []
    g.append([Ins(f"s_add_u32 m0, s{sM0X}, {slot*16384}"), Ins(f"buffer_load_dwordx4 v{vX[0]}, {srd(sSRD_X)}, s{sKB} offen lds", tag)])
    for k in (1, 2, 3):
        g.append([Ins(f"buffer_load_dwordx4 v{vX[k]}, {srd(sSRD_X)}, s{sKB} offen offset:{1024*k} lds", tag)])
    g.append([Ins(f"s_add_u32 m0, s{sM0W}, {slot*16384}"), Ins(f"buffer_load_dwordx4 v{vW[0]}, {srd(sSRD_BR)}, s{sKB} offen lds", tag)])
    g.append([Ins(f"buffer_load_dwordx4 v{vW[1]}, {srd(sSRD_BR)}, s{sKB} offen offset:1024 lds", tag)])
    g.append([Ins(f"buffer_load_dwordx4 v{vW[2]}, {srd(sSRD_BI)}, s{sKB} offen offset:2048 lds", tag)])
    g.append([Ins(f"buffer_load_dwordx4 v{vW[3]}, {srd(sSRD_BI)}, s{sKB} offen offset:3072 lds", tag)])
    g.append([Ins(f"s_add_u32 m0, s{sM0M}, {slot*2048}"), Ins("s_mov_b32 exec_hi, 0"),
              Ins(f"buffer_load_dwordx4 v{vM}, {srd(sSRD_MX)}, s{sKB} offen lds", tag), Ins("s_mov_b32 exec_hi, -1"),
              Ins(f"s_add_u32 s{sKB}, s{sKB}, 128")])
    return g
def flat(g):
    o = []
    for x in g: o += x if isinstance(x, list) else [x]
    return o

P.add(flat(dma_stage(0, "st0")))
mk_srd(sSRD_WS, 88, WS_SIZE)
mk_srd(sSRD_DBG, 86, 256)
E(f"""
s_lshl_b32 s{sT0}, s{sHD}, 3
s_add_u32 s{sT0}, s{sT0}, s{sJ}
s_mul_i32 s{sT0}, s{sT0}, 12288
s_add_u32 s{sSRD_AG}, s88, s{sT0}
s_addc_u32 s{sSRD_AG+1}, s89, 0
s_mov_b32 s{sSRD_AG+2}, 12288
s_mov_b32 s{sSRD_AG+3}, 0x20000
s_mul_i32 s{sT1}, s{sC}, 768
s_add_u32 s{sT0}, s{sT0}, s{sT1}
s_lshl_b32 s{sT2}, s{sW}, 7
v_lshlrev_b32 v{vT+13}, 3, v{vI}
v_add_u32 v{vT+13}, s{sT2}, v{vT+13}
v_and_b32 v{vT+14}, 7, v{vI}
v_lshlrev_b32 v{vT+14}, 5, v{vT+14}
v_lshrrev_b32 v{vT+15}, 3, v{vI}
v_lshl_add_u32 v{vT+16}, v{vQ}, 2, v{vT+13}
v_add_u32 v{vPUB}, s{sT0}, v{vT+16}
s_lshl_b32 s{sT2}, s{sW}, 3
s_add_u32 s{sT2}, s{sT2}, s{sT0}
s_add_u32 s{sT2}, s{sT2}, 512
v_lshl_add_u32 v{vT+16}, v{vT+15}, 2, v{vT+14}
v_add_u32 v{vT+16}, s{sT2}, v{vT+16}
v_cmp_eq_u32 vcc, 2, v{vQ}
v_cndmask_b32 v{vPUB}, v{vPUB}, v{vT+16}, vcc
s_lshl_b32 s{sT0}, s{sHD}, 4
s_add_u32 s{sT0}, s{sT0}, s{sC}
s_mul_i32 s{sHSRC}, s{sT0}, {2*HHALF}
s_add_u32 s{sHSRC}, s{sHSRC}, {WS_H}
s_lshl_b32 s{sT0}, s{sT0}, 7
s_add_u32 s{sT0}, s{sT0}, {WS_FLAG}
s_mov_b32 s{sM08}, s{sT0}
s_lshl_b32 s{sT2}, s{sJ}, 4
s_add_u32 s{sT0}, s{sT0}, s{sT2}
s_lshl_b32 s{sT2}, s{sW}, 2
s_add_u32 s{sT0}, s{sT0}, s{sT2}
v_mov_b32 v{vT+16}, s{sT0}
v_cmp_eq_u32 vcc, 48, v{vL}
v_cndmask_b32 v{vPUB}, v{vPUB}, v{vT+16}, vcc
v_mov_b32 v{vT+16}, 0x7ffffff0
v_cmp_lt_u32 vcc, 48, v{vL}
v_cndmask_b32 v{vPUB}, v{vPUB}, v{vT+16}, vcc
v_mov_b32 v{vT+17}, -1
buffer_store_dword v{vT+17}, v{vPUB}, {srd(sSRD_WS)}, 0 offen sc1
""", tag="clr")
sFLAGB = 3
E(f"s_mov_b32 s{sFLAGB}, s{sM08}")
P.add(flat(dma_stage(1, "st1")))
P.add(flat(dma_stage(2, "st2")))
E(f"""
s_sub_u32 s{sT1}, s{sC}, 1
v_sub_u32 v{vT+16}, s{sT1}, v{vQ}
v_mul_i32_i24 v{vT+16}, 768, v{vT+16}
v_add_u32 v{vG1[0]}, v{vT+16}, v{vT+13}
v_lshl_add_u32 v{vT+17}, v{vT+15}, 4, v{vT+14}
v_add_u32 v{vT+17}, 512, v{vT+17}
v_add_u32 v{vG2[0]}, v{vT+16}, v{vT+17}
""")
for k in (1, 2, 3):
    E(f"v_subrev_u32 v{vG1[k]}, {3072*k}, v{vG1[0]}\nv_subrev_u32 v{vG2[k]}, {3072*k}, v{vG2[0]}")
E(f"""
v_lshrrev_b32 v{vT+16}, 1, v{vI}
v_xor_b32 v{vT+16}, v{vQ}, v{vT+16}
v_lshlrev_b32 v{vT+16}, 4, v{vT+16}
v_lshl_add_u32 v{vRA[0]}, v{vI}, 7, v{vT+16}
v_xor_b32 v{vRA[1]}, 64, v{vRA[0]}
v_add_u32 v{vRAM[0]}, s{sM0X}, v{vRA[0]}
v_add_u32 v{vRAM[1]}, s{sM0X}, v{vRA[1]}
v_add_u32 v{vRB[0]}, s{sM0W}, v{vRA[0]}
v_add_u32 v{vRB[1]}, s{sM0W}, v{vRA[1]}
v_add_u32 v{vRM[0]}, {L_M}, v{vRA[0]}
v_add_u32 v{vRM[1]}, {L_M}, v{vRA[1]}
""")
E(f"""
v_and_b32 v{vT+16}, 3, v{vI}
v_lshlrev_b32 v{vT+16}, 4, v{vT+16}
v_lshrrev_b32 v{vT+17}, 1, v{vQ}
v_lshl_add_u32 v{vT+16}, v{vT+17}, 6, v{vT+16}
v_bfe_u32 v{vT+17}, v{vI}, 2, 1
v_lshl_add_u32 v{vT+16}, v{vT+17}, 8, v{vT+16}
v_and_b32 v{vT+17}, 1, v{vQ}
v_lshl_add_u32 v{vT+16}, v{vT+17}, 9, v{vT+16}
s_mul_i32 s{sT0}, s{sJ}, 9
s_lshl_b32 s{sT1}, s{sW}, 1
s_add_u32 s{sT1}, s{sT1}, s{sT0}
v_add_u32 v{vT+17}, s{sT1}, v{vT+15}
v_lshrrev_b32 v{vT+18}, 1, v{vT+17}
v_lshlrev_b32 v{vT+18}, 11, v{vT+18}
v_and_b32 v{vT+17}, 1, v{vT+17}
v_lshl_add_u32 v{vT+18}, v{vT+17}, 7, v{vT+18}
v_add3_u32 v{vHS}, v{vT+16}, v{vT+18}, s{sHSRC}
s_add_u32 s{sT0}, s{sT0}, 8
s_lshr_b32 s{sT1}, s{sT0}, 1
s_lshl_b32 s{sT1}, s{sT1}, 11
s_and_b32 s{sT0}, s{sT0}, 1
s_lshl_b32 s{sT0}, s{sT0}, 7
s_add_u32 s{sT0}, s{sT0}, s{sT1}
s_and_b32 s{sT1}, s{sW}, 1
s_lshl_b32 s{sT1}, s{sT1}, 10
s_add_u32 s{sT0}, s{sT0}, s{sT1}
s_lshr_b32 s{sT1}, s{sW}, 1
s_mul_i32 s{sT1}, s{sT1}, {HHALF}
s_add_u32 s{sT0}, s{sT0}, s{sT1}
s_add_u32 s{sT0}, s{sT0}, s{sHSRC}
v_mul_u32_u24 v{vT+17}, 73728, v{vT+15}
v_add3_u32 v{vHSM}, v{vT+16}, v{vT+17}, s{sT0}
s_mul_i32 s{sT0}, s{sHF}, {HHALF}
s_add_u32 s{sHSRC}, s{sHSRC}, s{sT0}
""")
mk_srd(sSRD_CR, 74, WBYTES, 4096)
mk_srd(sSRD_CI, 76, WBYTES, 4096)
mk_srd(sSRD_OUT, 84, OUTB)
E(f"""
s_cmp_lt_u32 s{sW}, 2
s_cselect_b32 s{sSRD_C8}, s{sSRD_CR}, s{sSRD_CI}
s_cselect_b32 s{sSRD_C8+1}, s{sSRD_CR+1}, s{sSRD_CI+1}
s_mov_b32 s{sSRD_C8+2}, {WBYTES+4096}
s_mov_b32 s{sSRD_C8+3}, 0x20000
""")
E(f"""
s_mul_i32 s{sT0}, s{sE}, 288
s_lshl_b32 s{sT1}, s{sW}, 6
v_lshlrev_b32 v{vT+16}, 1, v{vI}
v_add_u32 v{vT+16}, s{sT0}, v{vT+16}
v_add_u32 v{vT+17}, s{sT1}, v{vT+16}
global_load_ushort v{pD}, v{vT+17}, s[80:81]
global_load_ushort v{pD+1}, v{vT+17}, s[80:81] offset:32
global_load_ushort v{pD+2}, v{vT+16}, s[80:81] offset:256
""")
kSW, kSW4, kA8, kF = 250, 251, 252, 253
E(f"""
v_mov_b32 v{kSW}, v{sw_}
v_mov_b32 v{kSW4}, v{vT+9}
v_mov_b32 v{kA8}, v{vT+8}
""")
vV8, vXS0, vXS1, vXS8 = 254, 246, 247, 248
E(f"""
s_mul_i32 s{sT0}, s{sE}, 144
s_and_b32 s{sT1}, s{sW}, 1
s_lshl_b32 s{sT2}, s{sT1}, 3
s_add_u32 s{sT0}, s{sT0}, s{sT2}
s_add_u32 s{sT0}, s{sT0}, 128
s_mul_i32 s{sT0}, s{sT0}, {ROWB}
s_add_u32 s{sT0}, s{sT0}, 4096
s_lshl_b32 s{sT2}, s{sT1}, 6
v_xor_b32 v{vT+16}, s{sT2}, v{kSW}
v_add3_u32 v{vV8}, v{kA8}, v{vT+16}, s{sT0}
s_lshr_b32 s{sT2}, s{sW}, 1
s_mul_i32 s{sM08}, s{sT2}, 18432
s_lshl_b32 s{sT0}, s{sT1}, 10
s_add_u32 s{sM08}, s{sM08}, s{sT0}
s_add_u32 s{sM08}, s{sM08}, {L_C8}
""")
E(f"""
v_lshlrev_b32 v{vT+16}, 5, v{vQ}
v_bfe_u32 v{vT+17}, v{vL}, 2, 1
v_lshl_add_u32 v{vT+16}, v{vT+17}, 4, v{vT+16}
v_bfe_u32 v{vT+17}, v{vL}, 3, 1
v_add_u32 v{vT+16}, v{vT+16}, v{vT+17}
v_and_b32 v{vT+17}, 1, v{vQ}
v_xor_b32 v{vT+17}, s{sT1}, v{vT+17}
v_lshl_add_u32 v{vT+14}, v{vT+17}, 1, v{vT+16}
v_xor_b32 v{vT+17}, 1, v{vT+17}
v_lshl_add_u32 v{vT+15}, v{vT+17}, 1, v{vT+16}
v_mul_u32_u24 v{vT+14}, {ROWB}, v{vT+14}
v_mul_u32_u24 v{vT+15}, {ROWB}, v{vT+15}
v_and_b32 v{vT+16}, 3, v{vL}
v_lshlrev_b32 v{vT+16}, 4, v{vT+16}
s_mul_i32 s{sT0}, s{sC}, {128*ROWB}
s_mul_i32 s{sT2}, s{sE}, 288
s_add_u32 s{sT0}, s{sT0}, s{sT2}
s_add_u32 s{sT0}, s{sT0}, 4096
s_lshl_b32 s{sT2}, s{sW}, 6
s_add_u32 s{sT2}, s{sT2}, s{sT0}
v_add3_u32 v{vXS0}, v{vT+14}, v{vT+16}, s{sT2}
v_add3_u32 v{vXS1}, v{vT+15}, v{vT+16}, s{sT2}
v_and_b32 v{vT+16}, 16, v{vT+16}
s_add_u32 s{sT0}, s{sT0}, 256
v_add3_u32 v{vXS8}, v{vT+14}, v{vT+16}, s{sT0}
""")
E(f"""
s_lshr_b32 s{sT0}, s{sW}, 1
s_lshl_b32 s{sT1}, s{sHF}, 1
s_add_u32 s{sT2}, s{sT1}, s{sT0}
s_xor_b32 s{sT0}, s{sT0}, 1
s_add_u32 s{sT1}, s{sT1}, s{sT0}
s_mul_i32 s{sXSO}, s{sT2}, {4*ROWB}
s_mul_i32 s{sXSO+1}, s{sT1}, {4*ROWB}
s_mul_i32 s{sSO}, s{sT2}, {4*4608}
s_mul_i32 s{sSO+4}, s{sT1}, {4*4608}
""")
for sh in range(2):
    for r in (1, 2, 3):
        E(f"s_add_u32 s{sSO+4*sh+r}, s{sSO+4*sh}, {(16*(r&1)+(r>>1))*4608}")
E(f"s_mov_b32 s{sK1}, 73728\ns_mov_b32 s{sK2}, {HHALF}\ns_mov_b32 s{sK3}, {HHALF+73728}")
E(f"s_mul_i32 s{sM0C}, s{sW}, 24576")

K = []
def k(t):
    for line in t.strip().split("\n"):
        if line.strip(): K.append(line.strip())
LOG2E = "0x3fb8aa3b"; INV2PI = "0x3e22f983"
t0, t1, t2, t3, t4, t5 = [vT + n for n in range(6)]
zR = [vT + 6, vT + 8]; zA = [vT + 7, vT + 9]
fQ, fN = vT + 10, vT + 11
def power(dr, di, st, n):
    src = n if isinstance(n, str) else f"v{n}"
    k(f"""
    v_mul_f32 v{t0}, {src}, v{zR[st]}
    v_mul_f32 v{t1}, {src}, v{zA[st]}
    v_exp_f32 v{t0}, v{t0}
    v_fract_f32 v{t1}, v{t1}
    v_cos_f32 v{t2}, v{t1}
    v_sin_f32 v{t1}, v{t1}
    v_mul_f32 v{dr}, v{t0}, v{t2}
    v_mul_f32 v{di}, v{t0}, v{t1}
    """)
def cmul(dr, di, ar, ai, br, bi):
    k(f"""
    v_mul_f32 v{dr}, v{ar}, v{br}
    v_mul_f32 v{di}, v{ar}, v{bi}
    v_fma_f32 v{dr}, -v{ai}, v{bi}, v{dr}
    v_fma_f32 v{di}, v{ai}, v{br}, v{di}
    """)
def fl(x):
    import struct
    return "0x%08x" % struct.unpack("<I", struct.pack("<f", float(x)))[0]
for st, (cl, cc) in enumerate(((cL1, cC1), (cLM, cCM))):
    pr, pi, pd = pL + 3 * st, pL + 3 * st + 1, pL + 3 * st + 2
    k(f"""
    v_lshlrev_b32 v{pr}, 16, v{pr}
    v_lshlrev_b32 v{pi}, 16, v{pi}
    v_lshlrev_b32 v{pd}, 16, v{pd}
    v_mul_f32 v{pd}, {LOG2E}, v{pd}
    v_exp_f32 v{pd}, v{pd}
    v_max_f32 v{t4}, |v{pr}|, |v{pi}|
    v_cvt_pk_bf16_f32 v{pd}, v{pd}, v{pd}
    v_rcp_f32 v{t5}, v{t4}
    v_lshlrev_b32 v{pd}, 16, v{pd}
    v_mul_f32 v{zR[st]}, v{pd}, v{pr}
    v_mul_f32 v{zA[st]}, v{pd}, v{pi}
    v_mul_f32 v{zR[st]}, {LOG2E}, v{zR[st]}
    v_mul_f32 v{zA[st]}, {INV2PI}, v{zA[st]}
    v_exp_f32 v{t0}, v{zR[st]}
    v_rndne_f32 v{t1}, v{zA[st]}
    v_sub_f32 v{zA[st]}, v{zA[st]}, v{t1}
    v_cos_f32 v{t2}, v{zA[st]}
    v_sin_f32 v{t1}, v{zA[st]}
    v_mul_f32 v{cl}, v{t0}, v{t2}
    v_mul_f32 v{cl+1}, v{t0}, v{t1}
    v_mul_f32 v{pr}, v{pr}, v{t5}
    v_mul_f32 v{pi}, v{pi}, v{t5}
    v_mul_f32 v{t0}, v{pr}, v{pr}
    v_fma_f32 v{t0}, v{pi}, v{pi}, v{t0}
    v_mul_f32 v{t0}, v{t0}, v{t4}
    v_rcp_f32 v{t0}, v{t0}
    v_add_f32 v{t1}, -1.0, v{cl}
    v_mul_f32 v{t2}, v{t1}, v{pr}
    v_fma_f32 v{t2}, v{cl+1}, v{pi}, v{t2}
    v_mul_f32 v{t3}, v{cl+1}, v{pr}
    v_fma_f32 v{t3}, -v{t1}, v{pi}, v{t3}
    v_add_f32 v{t0}, v{t0}, v{t0}
    v_mul_f32 v{cc}, v{t2}, v{t0}
    v_mul_f32 v{cc+1}, v{t3}, v{t0}
    """)
k(f"""
v_cvt_f32_u32 v{fQ}, v{vQ}
v_cmp_gt_u32 vcc, 8, v{vI}
v_mov_b32 v{t0}, 1.0
v_cndmask_b32 v{cSGN}, v{t0}, -1.0, vcc
""".replace("v_cndmask_b32 v%d, v%d, -1.0, vcc" % (cSGN, t0), "v_cndmask_b32_e64 v%d, v%d, -1.0, vcc" % (cSGN, t0)))
u0, u1 = vT + 12, vT + 13
k(f"v_mul_f32 v{fN}, {fl(-32)}, v{fQ}\nv_add_f32 v{fN}, {fl(112)}, v{fN}")
power(u0, u1, 0, fN); cmul(cPAr, cPAi, u0, u1, cC1, cC1 + 1)
k(f"v_add_f32 v{fN}, {fl(-16)}, v{fN}")
power(u0, u1, 0, fN); cmul(cPAr + 1, cPAi + 1, u0, u1, cC1, cC1 + 1)
fW = vT + 14
k(f"v_cvt_f32_u32 v{fW}, s{sW}\nv_mul_f32 v{fW}, 4.0, v{fW}")
k(f"v_sub_f32 v{fN}, v{fN}, v{fW}\nv_add_f32 v{fN}, {fl(28)}, v{fN}")
power(u0, u1, 1, fN); cmul(cPMa, cPMb, u0, u1, cCM, cCM + 1)
k(f"v_add_f32 v{fN}, {fl(-16)}, v{fN}")
power(u0, u1, 1, fN); cmul(cPMa + 1, cPMb + 1, u0, u1, cCM, cCM + 1)
k(f"""
v_mul_f32 v{cPMb}, v{cSGN}, v{cPMb}
v_mul_f32 v{cPMb+1}, v{cSGN}, v{cPMb+1}
v_mul_f32 v{cLM+1}, v{cSGN}, v{cLM+1}
v_mul_f32 v{cCM+1}, v{cSGN}, v{cCM+1}
""")
power(cR4, cR4 + 1, 0, fl(512)); power(cMR4, cMR4 + 1, 1, fl(512))
k(f"v_mul_f32 v{fN}, {fl(128)}, v{fQ}")
power(cRQ, cRQ + 1, 0, fN); power(cMRQ, cMRQ + 1, 1, fN)
power(cMU, cMU + 1, 0, fl(16)); power(cNU, cNU + 1, 0, fl(32))
power(cMMU, cMMU + 1, 1, fl(16)); power(cMNU, cMNU + 1, 1, fl(32)); power(cMKA, cMKA + 1, 1, "4.0"); power(cMKW, cMKW + 1, 1, fW)
for r in (cMMU, cMNU, cMKA, cMKW):
    k(f"v_mul_f32 v{r+1}, v{cSGN}, v{r+1}")
k(f"v_mul_f32 v{fN}, {fl(32)}, v{fQ}")
power(cGMr, cGMi, 0, fN)
k(f"v_add_f32 v{fN}, {fl(16)}, v{fN}")
power(cGMr + 1, cGMi + 1, 0, fN)
k(f"v_add_f32 v{fN}, v{fN}, v{fW}")
k(f"v_cmp_gt_u32 vcc, 8, v{vI}")
for b in (1, 0):
    power(u0, u1, 1, fN)
    k(f"""
    v_cndmask_b32 v{cMX+b}, v{u1}, v{u0}, vcc
    v_cndmask_b32_e64 v{cMY+b}, v{u0}, -v{u1}, vcc
    """)
    if b: k(f"v_add_f32 v{fN}, {fl(-16)}, v{fN}")
k(f"""
v_cmp_eq_u32 vcc, 3, v{vQ}
v_cndmask_b32 v{cAQ+1}, 0, v{cNU+1}, vcc
v_cndmask_b32 v{cMAQ+1}, 0, v{cMNU+1}, vcc
v_cndmask_b32 v{cAQ}, 1.0, v{cNU}, vcc
v_cndmask_b32 v{cMAQ}, 1.0, v{cMNU}, vcc
v_cmp_lt_u32 vcc, 1, v{vQ}
v_cndmask_b32 v{cAQ}, 0, v{cAQ}, vcc
v_cndmask_b32 v{cMAQ}, 0, v{cMAQ}, vcc
v_and_b32 v{t0}, 1, v{vQ}
v_cvt_f32_u32 v{cBQ}, v{t0}
""")

def g1_reads(n):
    kc, s, b = n >> 1, n & 1, n & 1
    sl = kc % 3
    r = []
    r.append(f"ds_read_b128 {a4(FB(b,0))}, v{vRB[s]} offset:{sl*16384}")
    r.append(f"ds_read_b128 {a4(FA(b,0))}, v{vRA[s]} offset:{sl*16384}")
    r.append(f"ds_read_b128 {a4(FB(b,1))}, v{vRB[s]} offset:{sl*16384+2048}")
    for m in range(1, 8):
        r.append(f"ds_read_b128 {a4(FA(b,m))}, v{vRA[s]} offset:{sl*16384+m*2048}")
    r.append(f"ds_read_b128 {a4(FB(b,2))}, v{vRM[s]} offset:{sl*2048}")
    for m in range(2):
        r.append(f"ds_read_b128 {a4(FAM(b,m))}, v{vRAM[s]} offset:{sl*16384+m*2048}")
    return r
def g1_mfma(n):
    b = n & 1
    r = []
    def mf(acc, a, bb):
        c = "0" if n == 0 else v4(acc)
        r.append(f"v_mfma_f32_16x16x32_bf16 {v4(acc)}, {a4(a)}, {a4(bb)}, {c}")
    for m in range(8):
        mf(UR(m), FA(b, m), FB(b, 0)); mf(UI(m), FA(b, m), FB(b, 1))
    for m in range(2):
        mf(UM(m), FAM(b, m), FB(b, 2))
    return r

extra = []
for t in range(9):
    extra.append([Ins(f"s_add_u32 m0, s{sM08}, {t*2048}"), Ins(f"s_mov_b32 s{sT0}, {t*128}"),
                  Ins(f"buffer_load_dwordx4 v{vV8}, {srd(sSRD_C8)}, s{sT0} offen lds", "c8")])
xs = []
for s in range(5):
    vo = [vXS0, vXS1, vXS0, vXS1, vXS8][s]
    so = sXSO + (s >> 1 if s < 4 else 0)
    xs.append([Ins(f"s_mul_i32 s{sT0}, s{sW}, 5120"), Ins(f"s_add_u32 m0, s{sT0}, {L_XS + s*1024}"),
               Ins(f"buffer_load_dwordx4 v{vo}, {srd(sSRD_X)}, s{so} offen lds", "xs")])
extra = xs + extra

if PROF: E('s_mov_b32 s74, s92\ns_mov_b32 s75, s94')
stamp()
P.wait_vm(["st0", "clr"])
E("s_barrier")
stamp()
E(f"""
s_lshr_b32 s{sT0}, s2, 3
s_and_b32 s{sT0}, s{sT0}, 15
s_lshl_b32 s{sT1}, s{sHD}, 5
s_add_u32 s{sT0}, s{sT0}, s{sT1}
s_lshl_b32 s{sT0}, s{sT0}, 2
s_add_u32 s{sT0}, s{sT0}, 64
v_mov_b32 v{vT+16}, s{sT0}
v_mov_b32 v{vT+17}, 0x7ffffff0
v_cmp_eq_u32 vcc, 0, v0
v_cndmask_b32 v{vT+16}, v{vT+17}, v{vT+16}, vcc
v_mov_b32 v{vT+17}, 1
buffer_atomic_add v{vT+17}, v{vT+16}, {srd(sSRD_DBG)}, 0 offen sc1
""", tag="cnt")
P.add(g1_reads(0))
Kq = list(K)
pend_dma = []
for n in range(18):
    kc = n >> 1
    side = []
    if n & 1:
        P.wait_ds()
        if kc + 1 <= 8:
            P.wait_vm(f"st{kc+1}")
            E("s_barrier")
        if kc + 3 <= 8:
            pend_dma = dma_stage(kc % 3, f"st{kc+3}")
        elif kc + 3 == 9:
            pend_dma = extra[:7]
        elif kc + 3 == 10:
            pend_dma = extra[7:]
    rd = g1_reads(n + 1) if n + 1 < 18 else []
    mf = g1_mfma(n)
    body = []
    nd = (len(pend_dma) + 1) // 2 if n & 1 else len(pend_dma)
    dm = pend_dma[:nd]; pend_dma = pend_dma[nd:]
    for gi, m in enumerate(mf):
        body.append(m)
        if gi < len(rd): body.append(rd[gi])
        if gi % 4 == 1 and dm: body += dm.pop(0)
        nk = 1 if gi < len(rd) else 2
        for _ in range(nk):
            if Kq and n >= 1: body.append(Kq.pop(0))
    for d in dm: body += d
    P.add(body)
P.add(Kq)
stamp()

def U(s): return (UR(s >> 1) + 2 * (s & 1), UI(s >> 1) + 2 * (s & 1))
def UMs(s): return UM(s >> 1) + 2 * (s & 1)
eA, eB, eC, eD = vT, vT + 2, vT + 4, vT + 6
mE, mT = vT + 8, vT + 10
p1 = []
er, ei = U(0)
ta, tb = eA, eB
for s in range(1, 16):
    ur, ui = U(s)
    p1 += [pkfma(ta, cL1, er, ur, "l"), pkfma(tb, cL1, ei, ui, "l"), pkfma(tb, cL1, er, tb, "h"), pkfma(ta, cL1, ei, ta, "h", neg0="both")]
    er, ei = ta, tb
    ta, tb = (eC, eD) if ta == eA else (eA, eB)
ER, EI = er, ei
pm = []
me = UMs(0)
mt = mE
for s in range(1, 4):
    pm += [pkfma(mt, cLM, me, UMs(s), "l"), f"v_fmac_f32_dpp v{mt}, v{me}, v{cLM+1} {DPP8}", f"v_fmac_f32_dpp v{mt+1}, v{me+1}, v{cLM+1} {DPP8}"]
    me = mt
    mt = mT if mt == mE else mE
ME = me
gM, gM2 = vT + 12, vT + 13
pm += [f"v_mul_f32 v{gM}, v{cPMa}, v{ME}", f"v_fmac_f32_dpp v{gM}, v{ME}, v{cPMb} {DPP8}",
       f"v_fmac_f32 v{gM}, v{cPMa+1}, v{ME+1}", f"v_fmac_f32_dpp v{gM}, v{ME+1}, v{cPMb+1} {DPP8}",
       f"v_mov_b32 v{gM2}, v{gM}", "s_nop 0", "s_nop 0", f"v_permlane16_swap_b32 v{gM}, v{gM2}", f"v_add_f32 v{gM}, v{gM}, v{gM2}"]
P.add(interleave(p1, pm, start=2, every=3))
GR, GI = ta, tb
P.add([pkmul(GR, cPAr, ER), pkmul(GI, cPAr, EI), pkfma(GR, cPAi, EI, GR, neg0="both"), pkfma(GI, cPAi, ER, GI)])
E(f"""
v_add_f32 v{GR}, v{GR}, v{GR+1}
v_add_f32 v{GI}, v{GI}, v{GI+1}
v_permlane16_swap_b32 v{GR}, v{GI}
v_add_f32 v{GR}, v{GR}, v{GI}
v_permlane32_swap_b32 v{GR}, v{gM}
v_add_f32 v{GR}, v{GR}, v{gM}
v_min_u32 v{GR}, -2, v{GR}
s_mov_b32 exec_hi, 0xffff
""")
E(f"buffer_store_dword v{GR}, v{vPUB}, {srd(sSRD_WS)}, 0 offen sc1", tag="pub")
E("s_mov_b32 exec_hi, -1")
stamp()

cchk = vT + 26
E(f"""
v_lshlrev_b32 v{cchk}, 2, v{vI}
s_lshl_b32 s{sT0}, s{sHD}, 7
s_add_u32 s{sT0}, s{sT0}, 64
v_add_u32 v{vT+25}, s{sT0}, v{cchk}
""")
mP = vT + 14
scr = vT + 16
E(pkmul(mP, cCM, ME, "l"))
E(f"""
v_fmac_f32_dpp v{mP}, v{ME}, v{cCM+1} {DPP8}
v_fmac_f32_dpp v{mP+1}, v{ME+1}, v{cCM+1} {DPP8}
v_lshlrev_b32 v{scr}, 3, v0
v_add_u32 v{scr}, {L_SCR}, v{scr}
ds_write_b64 v{scr}, {v2(mP)}
""")
P.wait_vm(["c8", "xs"])
P.wait_ds()
E("s_barrier")
E(f"""
s_mul_i32 s{sT0}, s{sE}, 144
s_lshl_b32 s{sT1}, s{sW}, 5
s_add_u32 s{sT0}, s{sT0}, s{sT1}
s_mul_i32 s{sT0}, s{sT0}, {ROWB}
s_add_u32 s{sT0}, s{sT0}, 4096
v_add3_u32 v{vC[0]}, v{kA8}, v{kSW}, s{sT0}
s_add_u32 s{sT0}, s{sT0}, {8*ROWB-1024}
v_add3_u32 v{vC[1]}, v{kA8}, v{kSW4}, s{sT0}
v_add_u32 v{vC[2]}, {16*ROWB-2048}, v{vC[0]}
v_add_u32 v{vC[3]}, {16*ROWB-2048}, v{vC[1]}
v_add_u32 v{vRC[0]}, s{sM0C}, v{vRA[0]}
v_add_u32 v{vRC[1]}, s{sM0C}, v{vRA[1]}
v_add_u32 v{vR8[0]}, {L_C8}, v{vRA[0]}
v_add_u32 v{vR8[1]}, {L_C8}, v{vRA[1]}
""")
def c_dma(pc):
    sr = sSRD_CR if pc < 9 else sSRD_CI
    g = [[Ins(f"s_add_u32 m0, s{sM0C}, {(pc%6)*4096}"), Ins(f"s_mov_b32 s{sKB}, {(pc%9)*128}"),
          Ins(f"buffer_load_dwordx4 v{vC[0]}, {srd(sr)}, s{sKB} offen lds", f"c{pc}_")]]
    for kk in (1, 2, 3):
        g.append([Ins(f"buffer_load_dwordx4 v{vC[kk]}, {srd(sr)}, s{sKB} offen offset:{1024*kk} lds", f"c{pc}_")])
    return g
def c_read(pc):
    r = [("wvm", f"c{pc}_")]
    for s in range(2):
        for t in range(2):
            r.append(f"ds_read_b128 {CF(2*pc+s, t)}, v{vRC[s]} offset:{(pc%6)*4096+t*2048}")
    return r
E(f"buffer_load_dword v{cchk}, v{vT+25}, {srd(sSRD_DBG)}, 0 offen sc1", tag="cchk")
for pc in range(6): P.add(flat(c_dma(pc)))

e0, e1, e2, e3 = vT + 16, vT + 18, vT + 20, vT + 22
rdA = vT + 24
E(f"""
v_lshlrev_b32 v{rdA}, 3, v{vL}
v_add_u32 v{rdA}, {L_SCR}, v{rdA}
ds_read_b64 {v2(e0)}, v{rdA}
ds_read_b64 {v2(e1)}, v{rdA} offset:512
ds_read_b64 {v2(e2)}, v{rdA} offset:1024
ds_read_b64 {v2(e3)}, v{rdA} offset:1536
""")
def mx_axpy(dst, cst, x):
    return [pkfma(dst, cst, x, dst, "l"), f"v_fmac_f32_dpp v{dst}, v{x}, v{cst+1} {DPP8}", f"v_fmac_f32_dpp v{dst+1}, v{x+1}, v{cst+1} {DPP8}"]
def mx_axpy1(dst, cst, x):
    return [f"v_fmac_f32 v{dst}, v{cst}, v{x}", f"v_fmac_f32_dpp v{dst}, v{x}, v{cst+1} {DPP8}"]
P.add([pkmul(GR, cC1, ER, "l"), pkmul(GI, cC1, EI, "l"), pkfma(GR, cC1, EI, GR, "h", neg0="both"), pkfma(GI, cC1, ER, GI, "h")])
Fr, Fi, Yr, Yi = ER, EI, ER + 1, EI + 1
E(f"""
v_fma_f32 v{Fr}, v{cMU}, v{GR}, v{GR+1}
v_fma_f32 v{Fi}, v{cMU}, v{GI}, v{GI+1}
v_fma_f32 v{Fr}, -v{cMU+1}, v{GI}, v{Fr}
v_fma_f32 v{Fi}, v{cMU+1}, v{GR}, v{Fi}
v_mov_b32 v{Yr}, v{Fr}
v_mov_b32 v{Yi}, v{Fi}
v_permlane16_swap_b32 v{Fr}, v{Yr}
v_permlane16_swap_b32 v{Fi}, v{Yi}
v_fma_f32 v{Yr}, v{cNU}, v{Fr}, v{Yr}
v_fma_f32 v{Yi}, v{cNU}, v{Fi}, v{Yi}
v_fma_f32 v{Yr}, -v{cNU+1}, v{Fi}, v{Yr}
v_fma_f32 v{Yi}, v{cNU+1}, v{Fr}, v{Yi}
v_mov_b32 v{GR+1}, v{Yr}
v_mov_b32 v{GI+1}, v{Yi}
v_permlane32_swap_b32 v{Yr}, v{GR+1}
v_permlane32_swap_b32 v{Yi}, v{GI+1}
""")
BD = [CFV, CFV + 4, CFV + 8]
XF = [CFV + 12, CFV + 16, CFV + 20, CFV + 24, CFV + 28]
kq, ksh = gM, gM2
E(f"""
v_lshrrev_b32 v{kq}, 1, v{vI}
v_lshlrev_b32 v{ksh}, 2, v{vQ}
v_sub_u32 v{kq}, v{kq}, v{ksh}
v_and_b32 v{ksh}, 1, v{vI}
v_lshlrev_b32 v{ksh}, 4, v{ksh}
v_lshlrev_b32 v{pD}, v{ksh}, v{pD}
v_lshlrev_b32 v{pD+1}, v{ksh}, v{pD+1}
v_lshlrev_b32 v{pD+2}, v{ksh}, v{pD+2}
""")
for n in range(4):
    E(f"""
    v_cmp_eq_u32 vcc, {n}, v{kq}
    v_cndmask_b32 v{BD[0]+n}, 0, v{pD}, vcc
    v_cndmask_b32 v{BD[2]+n}, 0, v{pD+2}, vcc
    v_cmp_eq_u32 vcc, {n-8}, v{kq}
    v_cndmask_b32 v{BD[1]+n}, 0, v{pD+1}, vcc
    """)
E(f"""
v_lshlrev_b32 v{kq}, 6, v{vI}
v_lshl_add_u32 v{kq}, v{vQ}, 4, v{kq}
s_mul_i32 s{sT0}, s{sW}, 5120
s_add_u32 s{sT0}, s{sT0}, {L_XS}
v_add_u32 v{kq}, s{sT0}, v{kq}
""")
for s in range(5):
    E(f"ds_read_b128 {v4(XF[s])}, v{kq} offset:{s*1024}")
E(f"""
v_mul_f32 v{cLOCR}, v{cBQ}, v{Fr}
v_mul_f32 v{cLOCI}, v{cBQ}, v{Fi}
v_fma_f32 v{cLOCR}, v{cAQ}, v{Yr}, v{cLOCR}
v_fma_f32 v{cLOCI}, v{cAQ}, v{Yi}, v{cLOCI}
v_fma_f32 v{cLOCR}, -v{cAQ+1}, v{Yi}, v{cLOCR}
v_fma_f32 v{cLOCI}, v{cAQ+1}, v{Yr}, v{cLOCI}
v_fma_f32 v{cLOCR+1}, v{cMU}, v{cLOCR}, v{GR}
v_fma_f32 v{cLOCI+1}, v{cMU}, v{cLOCI}, v{GI}
v_fma_f32 v{cLOCR+1}, -v{cMU+1}, v{cLOCI}, v{cLOCR+1}
v_fma_f32 v{cLOCI+1}, v{cMU+1}, v{cLOCR}, v{cLOCI+1}
""")
for s in range(4):
    for t in range(2):
        E(f"v_mfma_f32_16x16x32_bf16 {v4(ACC2(s,t))}, {v4(XF[s])}, {v4(BD[t])}, 0")
E(f"v_mfma_f32_16x16x32_bf16 {v4(ACC8)}, {v4(XF[4])}, {v4(BD[2])}, 0")
P.add(mx_axpy(e1, cMKA, e0)); P.add(mx_axpy(e2, cMKA, e1)); P.add(mx_axpy(e3, cMKA, e2))
LOCM = mP
E(f"v_mov_b32 v{LOCM}, 0\nv_mov_b32 v{LOCM+1}, 0")
for w, src in ((1, e0), (2, e1), (3, e2)):
    E(f"""
    s_cmp_eq_u32 s{sW}, {w}
    s_cselect_b64 vcc, -1, 0
    v_cndmask_b32 v{LOCM}, v{LOCM}, v{src}, vcc
    v_cndmask_b32 v{LOCM+1}, v{LOCM+1}, v{src+1}, vcc
    """)
mX, mY, mS = e0, e0 + 1, e1
P.add(mx_axpy1(e3 + 1, cMMU, e3))
E(f"""
v_mov_b32 v{mX}, v{e3+1}
v_mov_b32 v{mY}, v{e3+1}
v_permlane16_swap_b32 v{mX}, v{mY}
""")
P.add(mx_axpy1(mY, cMNU, mX))
E(f"""
v_mov_b32 v{e2}, v{mY}
v_permlane32_swap_b32 v{mY}, v{e2}
v_mul_f32 v{mS}, v{cBQ}, v{mX}
""")
P.add(mx_axpy1(mS, cMAQ, mY))
E(f"v_mov_b32 v{mS+1}, v{e3}")
P.add(mx_axpy1(mS + 1, cMMU, mS))
P.add(mx_axpy(LOCM, cMKW, mS))
E(f"v_mov_b32 v{cAQ}, v{LOCM}\nv_mov_b32 v{cAQ+1}, v{LOCM+1}")
LOCM = cAQ
tp = vT
for s in range(16):
    ur, ui = U(s)
    tt = tp + 2 * (s & 1)
    P.add([pkmul(tt, cC1, ui, "h"), pkmul(ui, cC1, ui, "l"), pkfma(ui, cC1, ur, ui, "h"),
           f"v_pk_fma_f32 {v2(ur)}, {v2(cC1)}, {v2(ur)}, {v2(tt)} op_sel:[0,0,0] op_sel_hi:[0,1,1] neg_lo:[0,0,1] neg_hi:[0,0,1]"])
for s in range(4):
    um = UMs(s)
    tt = tp + 2 * (s & 1)
    P.add([f"v_mul_f32_dpp v{tt}, v{um}, v{cCM+1} {DPP8}", f"v_mul_f32_dpp v{tt+1}, v{um+1}, v{cCM+1} {DPP8}", pkfma(um, cCM, um, tt, "l")])
stamp()
E(f"s_mov_b32 s{sCNT}, 0")
E(f"v_cmp_gt_u32 vcc, 8, v{cchk}")
E("s_cbranch_vccz L_clr_ok")
P.label("L_clr_loop")
E(f"""
s_sleep 2
buffer_load_dword v{cchk}, v{vT+25}, {srd(sSRD_DBG)}, 0 offen sc1
s_add_u32 s{sCNT}, s{sCNT}, 1
s_cmp_gt_u32 s{sCNT}, {SPIN_MAX}
s_cbranch_scc1 L_clr_ok
s_waitcnt vmcnt(0)
v_cmp_gt_u32 vcc, 8, v{cchk}
s_cbranch_vccnz L_clr_loop
""")
P.label("L_clr_ok")
gA = [vT + 2 * kk for kk in range(4)]
gB = [vT + 8 + 4 * kk for kk in range(4)]
gX = vT + 24
E(f"s_mov_b32 s{sCNT}, 0")
P.label("L_g_loop")
for kk in range(4):
    E(f"buffer_load_dwordx2 {v2(gA[kk])}, v{vG1[kk]}, {srd(sSRD_AG)}, 0 offen sc1")
    E(f"buffer_load_dwordx4 {v4(gB[kk])}, v{vG2[kk]}, {srd(sSRD_AG)}, 0 offen sc1")
E(f"""
s_add_u32 s{sCNT}, s{sCNT}, 1
s_cmp_gt_u32 s{sCNT}, {SPIN_MAX}
s_waitcnt vmcnt(0)
""")
words = list(range(vT, vT + 24))
E(f"v_max3_u32 v{gX}, v{words[0]}, v{words[1]}, v{words[2]}")
E(f"v_max3_u32 v{gX+1}, v{words[3]}, v{words[4]}, v{words[5]}")
for n in range(6, 24, 4):
    E(f"v_max3_u32 v{gX}, v{gX}, v{words[n]}, v{words[n+1]}")
    if n + 3 < 24: E(f"v_max3_u32 v{gX+1}, v{gX+1}, v{words[n+2]}, v{words[n+3]}")
E(f"""
v_max_u32 v{gX}, v{gX}, v{gX+1}
v_cmp_eq_u32 vcc, -1, v{gX}
s_cbranch_scc1 L_g_ok
s_cbranch_vccnz L_g_loop
""")
P.label("L_g_ok")
stamp()
def chorner(T, Aa, R):
    return [pkfma(Aa, R, T, Aa, "l"), pkfma(Aa, R, T, Aa, "h", "s", neg0="lo")]
ga = []
for kk in (2, 1, 0): ga += chorner(gA[kk + 1], gA[kk], cR4)
ga += [pkmul(gA[1], cRQ, gA[0], "l"), pkfma(gA[1], cRQ, gA[0], gA[1], "h", "s", neg0="lo")]
gb = [f"v_pk_add_f32 {v2(gB[kk])}, {v2(gB[kk])}, {v2(gB[kk]+2)}" for kk in (3, 2, 1, 0)]
for kk in (2, 1, 0): gb += chorner(gB[kk + 1], gB[kk], cMR4)
gb += [pkmul(gB[1], cMRQ, gB[0], "l"), pkfma(gB[1], cMRQ, gB[0], gB[1], "h", "s", neg0="lo")]
P.add(interleave(gb, ga, start=3, every=1))
Ur, Ui, Vr, Vi = gA[1], gA[1] + 1, gB[1], gB[1] + 1
HR, HI, MR, MI = gA[2], gA[2] + 1, gA[3], gA[3] + 1
E(f"""
v_permlane16_swap_b32 v{Ur}, v{Ui}
v_permlane16_swap_b32 v{Vr}, v{Vi}
v_add_f32 v{Ur}, v{Ur}, v{Ui}
v_add_f32 v{Vr}, v{Vr}, v{Vi}
v_permlane32_swap_b32 v{Ur}, v{Vr}
v_add_f32 v{HR}, v{Ur}, v{Vr}
v_add_f32 v{MR}, v{Ur}, v{Vr}
v_permlane32_swap_b32 v{HR}, v{MR}
v_mov_b32 v{HI}, v{HR}
v_add_f32_dpp v{MI}, v{MR}, v{MR} {DPP8}
v_add_f32_dpp v{MR}, v{MR}, v{MR} {DPP8}
v_permlane16_swap_b32 v{HR}, v{HI}
v_permlane16_swap_b32 v{MR}, v{MI}
""")
P.add([pkfma(cLOCR, cGMr, HR, cLOCR, "n", "l"), pkfma(cLOCI, cGMr, HR, cLOCI, "n", "h"),
       pkfma(cLOCR, cGMi, HR, cLOCR, "n", "h", neg0="both"), pkfma(cLOCI, cGMi, HR, cLOCI, "n", "l"),
       pkfma(LOCM, cMX, MR, LOCM, "n", "l"), pkfma(LOCM, cMY, MR, LOCM, "n", "h")])
hsoff = {0: "0", 1: f"s{sK2}"}
hsoffI = {0: f"s{sK1}", 1: f"s{sK3}"}
p2 = []
hr, hi = cLOCR, cLOCI
for s in range(16):
    ur, ui = U(s)
    p2 += [pkfma(ur, cL1, hr, ur, "l"), pkfma(ui, cL1, hi, ui, "l"), pkfma(ur, cL1, hi, ur, "h", neg0="both"), pkfma(ui, cL1, hr, ui, "h")]
    hr, hi = ur, ui
    if s % 4 == 3:
        mp = s >> 2
        A_, B_ = UR(2 * mp), UR(2 * mp + 1)
        p2 += [f"v_cvt_pk_bf16_f32 v{A_}, v{A_}, v{A_+1}", f"v_cvt_pk_bf16_f32 v{A_+1}, v{A_+2}, v{A_+3}",
               f"v_cvt_pk_bf16_f32 v{A_+2}, v{B_}, v{B_+1}", f"v_cvt_pk_bf16_f32 v{A_+3}, v{B_+2}, v{B_+3}",
               Ins(f"buffer_store_dwordx4 {v4(A_)}, v{vHS}, {srd(sSRD_WS)}, {hsoff[mp>>1]} offen offset:{(mp&1)*1024} sc1", "hst")]
        A_, B_ = UI(2 * mp), UI(2 * mp + 1)
        p2 += [f"v_cvt_pk_bf16_f32 v{A_}, -v{A_}, -v{A_+1}", f"v_cvt_pk_bf16_f32 v{A_+1}, -v{A_+2}, -v{A_+3}",
               f"v_cvt_pk_bf16_f32 v{A_+2}, -v{B_}, -v{B_+1}", f"v_cvt_pk_bf16_f32 v{A_+3}, -v{B_+2}, -v{B_+3}",
               Ins(f"buffer_store_dwordx4 {v4(A_)}, v{vHS}, {srd(sSRD_WS)}, {hsoffI[mp>>1]} offen offset:{(mp&1)*1024} sc1", "hst")]
pm = []
hm = LOCM
for s in range(4):
    um = UMs(s)
    pm += mx_axpy(um, cLM, hm)
    hm = um
A_, B_ = UM(0), UM(1)
sgm = vT
pm += [f"v_cmp_lt_u32 vcc, 7, v{vI}", f"v_mov_b32 v{sgm}, 0x80008000", "s_nop 0", f"v_cndmask_b32 v{sgm}, 0, v{sgm}, vcc",
       f"v_cvt_pk_bf16_f32 v{A_}, v{A_}, v{A_+1}", f"v_cvt_pk_bf16_f32 v{A_+1}, v{A_+2}, v{A_+3}",
       f"v_cvt_pk_bf16_f32 v{A_+2}, v{B_}, v{B_+1}", f"v_cvt_pk_bf16_f32 v{A_+3}, v{B_+2}, v{B_+3}"]
pm += [f"v_xor_b32 v{A_+n}, v{sgm}, v{A_+n}" for n in range(4)]
pm += [Ins(f"buffer_store_dwordx4 {v4(A_)}, v{vHSM}, {srd(sSRD_WS)}, 0 offen sc1", "hst")]
P.add(interleave(p2, pm, start=1, every=3))
stamp()
for pc in range(6): P.add(c_read(pc))
P.wait_ds()
for pc in range(6, 12): P.add(flat(c_dma(pc)))
P.wait_vm("hst")
E(f"""
v_mov_b32 v{vT}, 1
s_mov_b32 exec_lo, 0
s_mov_b32 exec_hi, 0x10000
""")
E(f"buffer_store_dword v{vT}, v{vPUB}, {srd(sSRD_WS)}, 0 offen sc1", tag="flag")
E("s_mov_b64 exec, -1")
stamp()
for ks in range(24):
    E(f"ds_read_b128 {v4(C8V(ks))}, v{vR8[ks&1]} offset:{(ks>>1)*2048}")
w1, w2 = vT + 1, vT + 2
E(f"""
v_lshrrev_b32 v{w1}, 1, v{vQ}
v_lshlrev_b32 v{w1}, 11, v{w1}
v_lshrrev_b32 v{w2}, 2, v{vI}
v_lshl_add_u32 v{w1}, v{w2}, 4, v{w1}
v_bfe_u32 v{w2}, v{vI}, 1, 1
v_lshl_add_u32 v{w1}, v{w2}, 6, v{w1}
v_and_b32 v{w2}, 1, v{vQ}
v_lshl_add_u32 v{w1}, v{w2}, 7, v{w1}
v_and_b32 v{w2}, 1, v{vI}
v_lshl_add_u32 v{w1}, v{w2}, 9, v{w1}
v_lshl_add_u32 v{w1}, v{w2}, 3, v{w1}
s_and_b32 s{sT0}, s{sW}, 1
s_lshl_b32 s{sT0}, s{sT0}, 3
s_lshr_b32 s{sT1}, s{sW}, 1
s_lshl_b32 s{sT1}, s{sT1}, 10
s_or_b32 s{sT0}, s{sT0}, s{sT1}
v_xor_b32 v{vRH[0]}, s{sT0}, v{w1}
v_xor_b32 v{vRH[1]}, 8, v{vRH[0]}
v_xor_b32 v{vRH[2]}, 0x400, v{vRH[0]}
v_xor_b32 v{vRH[3]}, 0x408, v{vRH[0]}
v_and_b32 v{w2}, 1, v{vQ}
s_and_b32 s{sT0}, s{sW}, 1
v_xor_b32 v{w2}, s{sT0}, v{w2}
v_lshlrev_b32 v{w1}, 5, v{vQ}
v_lshl_add_u32 v{vO[0]}, v{w2}, 1, v{w1}
v_xor_b32 v{vO[1]}, 2, v{vO[0]}
v_mul_u32_u24 v{vO[0]}, 4608, v{vO[0]}
v_mul_u32_u24 v{vO[1]}, 4608, v{vO[1]}
s_mul_i32 s{sT0}, s{sC}, {128*4608}
s_mul_i32 s{sT1}, s{sHD}, 2304
s_add_u32 s{sT0}, s{sT0}, s{sT1}
s_mul_i32 s{sT1}, s{sE}, 576
s_add_u32 s{sT0}, s{sT0}, s{sT1}
v_lshlrev_b32 v{w1}, 2, v{vI}
v_add_u32 v{w1}, s{sT0}, v{w1}
v_add_u32 v{vO8}, v{vO[0]}, v{w1}
v_add_u32 v{vO8}, 512, v{vO8}
s_lshl_b32 s{sT1}, s{sW}, 7
v_add3_u32 v{vO[0]}, v{vO[0]}, v{w1}, s{sT1}
v_add3_u32 v{vO[1]}, v{vO[1]}, v{w1}, s{sT1}
""")
for pc in range(6, 12): P.add(c_read(pc))
P.wait_ds()
for pc in range(12, 18): P.add(flat(c_dma(pc)))
for pc in range(12, 18): P.add(c_read(pc))
P.wait_ds()
stamp()
vHD, vFA, vFD = vT + 8, vT + 9, vT + 10
E(f"""
v_lshlrev_b32 v{vHD}, 4, v{vL}
v_and_b32 v{vFA}, 31, v{vL}
v_lshlrev_b32 v{vFA}, 2, v{vFA}
v_add_u32 v{vFA}, s{sFLAGB}, v{vFA}
s_mov_b32 s{sCNT}, 0
s_lshl_b32 s{sT1}, s{sW}, 12
s_add_u32 s{sHSRC}, s{sHSRC}, s{sT1}
""")
P.label("L_f_loop")
E(f"""
buffer_load_dword v{vFD}, v{vFA}, {srd(sSRD_WS)}, 0 offen sc1
s_add_u32 s{sCNT}, s{sCNT}, 1
s_cmp_gt_u32 s{sCNT}, {SPIN_MAX}
s_waitcnt vmcnt(0)
v_cmp_ne_u32 vcc, 1, v{vFD}
s_cbranch_scc1 L_f_ok
s_cbranch_vccnz L_f_loop
""")
P.label("L_f_ok")
E("s_barrier")
stamp()
def h_dma(g):
    r = [[Ins(f"s_add_u32 m0, s{sT1}, {g*16384}"), Ins(f"s_add_u32 s{sKB}, s{sHSRC}, {g*16384}"),
          Ins(f"buffer_load_dwordx4 v{vHD}, {srd(sSRD_WS)}, s{sKB} offen sc1 lds", f"h{g}")]]
    for kk in (1, 2, 3):
        r.append([Ins(f"buffer_load_dwordx4 v{vHD}, {srd(sSRD_WS)}, s{sKB} offen offset:{1024*kk} sc1 lds", f"h{g}")])
    return r
def g2_reads(ks):
    b = ks & 1
    r = []
    if ks in (16, 32):
        r.append([Ins(f"v_add_u32 v{vRH[s]}, 0x10000, v{vRH[s]}") for s in range(4)])
    off = (ks % 16) * 4096
    for s in range(4):
        for rd in range(2):
            r.append(f"ds_read_b64_tr_b16 {v2(HF(b,s)+2*rd)}, v{vRH[s]} offset:{off+256*rd}")
    if ks >= 24:
        r.append(f"ds_read_b128 {v4(C8B(b))}, v{vR8[ks&1]} offset:{(ks>>1)*2048}")
    return r
def g2_mfma(ks):
    b = ks & 1
    r = []
    for s in range(4):
        for t in range(2):
            r.append(f"v_mfma_f32_16x16x32_bf16 {v4(ACC2(s,t))}, {v4(HF(b,s))}, {CF(ks,t)}, {v4(ACC2(s,t))}")
    c8 = v4(C8V(ks)) if ks < 24 else v4(C8B(b))
    r.append(f"v_mfma_f32_16x16x32_bf16 {v4(ACC8)}, {v4(HF(b,0))}, {c8}, {v4(ACC8)}")
    return r
HPRE = 3
for g in range(HPRE): P.add(flat(h_dma(g)))
P.wait_vm("h0")
E("s_barrier")
P.add(flat(g2_reads(0)))
pend = []
for ks in range(36):
    g = ks >> 2
    if ks % 4 == 0 and g + HPRE < 9: pend = h_dma(g + HPRE)
    if ks % 4 == 3 and g + 1 < 9:
        P.wait_vm(f"h{g+1}")
        E("s_barrier")
    rd = g2_reads(ks + 1) if ks + 1 < 36 else []
    body = []
    for gi, m in enumerate(g2_mfma(ks)):
        body.append(m)
        for _ in range(2 if gi == 0 else 1):
            if rd:
                x = rd.pop(0); body += x if isinstance(x, list) else [x]
        if gi in (3, 7) and pend and ks % 4 < 3: body += pend.pop(0)
    for x in rd: body += x if isinstance(x, list) else [x]
    P.add(body)
stamp()
for s in range(4):
    for r in range(4):
        for t in range(2):
            E(f"buffer_store_dword v{ACC2(s,t)+r}, v{vO[s&1]}, {srd(sSRD_OUT)}, s{sSO+4*(s>>1)+r} offen offset:{64*t}")
for r in range(4):
    E(f"buffer_store_dword v{ACC8+r}, v{vO8}, {srd(sSRD_OUT)}, s{sSO+r} offen")
if AMP >= 0:
    E("s_waitcnt vmcnt(0)")
    E("s_memrealtime s[66:67]")
    E("s_waitcnt lgkmcnt(0)")
    src = "s66" if AMP >= nstamp[0] else f"s{sSTAMP+2*AMP}"
    E(f"s_sub_u32 s68, {src}, s75\ns_lshl_b32 s68, s68, 2\ns_min_u32 s68, s68, 100000")
    P.label("L_amp")
    E("""
    s_sleep 1
    s_memrealtime s[70:71]
    s_waitcnt lgkmcnt(0)
    s_sub_u32 s70, s70, s66
    s_cmp_lt_u32 s70, s68
    s_cbranch_scc1 L_amp
    """)
elif PROF:
    E("s_waitcnt vmcnt(0)")
    E("s_memtime s[64:65]")
    E("s_memrealtime s[66:67]")
    E("s_waitcnt lgkmcnt(0)")
    E(f"v_mov_b32 v{vT}, 0")
    PROFW = [("s75", None), ("s66", None)] + [(f"s{sSTAMP+2*n}", 1) for n in range(nstamp[0])] + [("s64", 1)]
    for n, (sr, sub) in enumerate(PROFW):
        if sub: E(f"s_sub_u32 {sr}, {sr}, s74")
        E(f"v_writelane_b32 v{vT}, {sr}, {n}")
    E(f"s_getreg_b32 s{sT0}, hwreg(HW_REG_XCC_ID)")
    E(f"v_writelane_b32 v{vT}, s{sT0}, 15")
    E(f"""
    s_lshl_b32 s{sT0}, s2, 8
    s_lshl_b32 s{sT1}, s{sW}, 6
    s_add_u32 s{sT0}, s{sT0}, s{sT1}
    s_add_u32 s{sT0}, s{sT0}, {WS_PROF}
    v_lshlrev_b32 v{vT+1}, 2, v{vL}
    s_mov_b32 exec_hi, 0
    s_mov_b32 exec_lo, 0xffff
    buffer_store_dword v{vT}, v{vT+1}, {srd(sSRD_WS)}, s{sT0} offen
    """)
    if args.dbgprof:
        E(f"""
        s_not_b32 s75, s75
        v_writelane_b32 v{vT}, s75, 0
        s_cmp_lg_u32 s{sW}, 0
        s_cbranch_scc1 L_end
        buffer_atomic_umax v{vT}, v{vT+1}, {srd(sSRD_DBG)}, 0 offen sc1
        """)
P.label("L_end")
E("s_endpgm")
P.label("L_code_end")

hdr = open("concat_heads__ssm_conv_s5__ssm_conv_s5__prompt.s.ref").read().split("\n")
head = [l for l in hdr if l.startswith(";") and "@launch" not in l and "Override" not in l and "grid=ceil" not in l]
txt = "\n".join(head) + f"\n; @launch grid=(256,1,1) block=(256,1,1) lds={LDS_TOTAL}\n"
txt += f""".amdgcn_target "amdgcn-amd-amdhsa--gfx950"
.text
.globl {NAME}
.p2align 8
.type {NAME},@function
.set CODE_LAST, @CODELAST@
{NAME}:
"""
txt += P.finalize()
txt += f"""
.section .rodata,"a"
.p2align 6
.amdhsa_kernel {NAME}
  .amdhsa_next_free_vgpr 512
  .amdhsa_next_free_sgpr 102
  .amdhsa_accum_offset 256
  .amdhsa_group_segment_fixed_size 0
  .amdhsa_kernarg_size 168
  .amdhsa_user_sgpr_count 2
  .amdhsa_user_sgpr_kernarg_segment_ptr 1
  .amdhsa_system_sgpr_workgroup_id_x 1
.end_amdhsa_kernel
"""
import subprocess, re, tempfile, os
def code_last(t):
    with tempfile.TemporaryDirectory() as d:
        open(d + "/a.s", "w").write(t.replace("@CODELAST@", "0x1234"))
        subprocess.run(["clang", "-x", "assembler", "-target", "amdgcn-amd-amdhsa", "-mcpu=gfx950", "-c", d + "/a.s", "-o", d + "/a.o"], check=True)
        o = subprocess.run(["llvm-objdump", "-t", d + "/a.o"], capture_output=True, text=True).stdout
        sym = {}
        for l in o.splitlines():
            m = re.match(r"([0-9a-f]+) .* (L_\w+)$", l)
            if m: sym[m.group(2)] = int(m.group(1), 16)
        return sym["L_code_end"] - sym["L_pc"] - 4
cl = code_last(txt)
assert cl < 32768
txt = txt.replace("@CODELAST@", str(cl))
open(args.o, "w").write(txt)
print("code bytes", cl)
```

```python
import sys, argparse
from asmlib import Prog, Ins, interleave

ap = argparse.ArgumentParser()
ap.add_argument("--prof", action="store_true")
ap.add_argument("--dbgprof", action="store_true")
ap.add_argument("--amp", type=int, default=-1)
ap.add_argument("--ost", default="")
ap.add_argument("--tiny", type=int, default=0)
ap.add_argument("-o", default="concat_heads__ssm_conv_s5__ssm_conv_s5__prompt.s")
args = ap.parse_args()
PROF = args.prof or args.dbgprof or args.amp >= 0
AMP = args.amp
NAME = "concat_heads__ssm_conv_s5__ssm_conv_s5__prompt_kernel"

ROWB = 1152
XBYTES = 2048 * ROWB
WBYTES = 576 * ROWB
OUTB = 2048 * 4608
WS_FLAG = 0x40000
WS_PROF = 0x50000
WS_H = 0x100000
WS_SIZE = 0xA00000
HHALF = 147456
SPIN_MAX = 200000

L_X, L_W, L_M = 0, 49152, 98304
L_XS = 104448
L_SCR = 124928
L_C8 = 126976
LDS_TOTAL = 163840

sSRD_X, sSRD_BR, sSRD_BI, sSRD_MX, sSRD_CR, sSRD_CI, sSRD_WS, sSRD_OUT, sSRD_DBG, sSRD_AG, sSRD_C8 = 4, 8, 12, 16, 20, 24, 28, 32, 36, 40, 44
sHD, sC, sJ, sW, sHF, sE, sKB, sT0, sT1, sT2 = 48, 49, 50, 51, 52, 53, 54, 55, 56, 57
sM0X, sM0W, sM0M, sM0C, sM08, sHSRC = 58, 59, 60, 61, 62, 63
sPTR = 64
sSO = 64
sXSO = 72
sMSK = 74
sCNT = 76
sK1, sK2, sK3 = 77, 78, 79
sSTAMP = 80
def srd(b): return f"s[{b}:{b+3}]"

vL, vQ, vI = 1, 2, 3
vX = [4, 5, 6, 7]; vW = [8, 9, 10, 11]; vM = 12
vRA = [13, 14]; vRB = [15, 16]; vRM = [17, 18]; vRAM = [19, 20]
vPUB = 21
vG1 = [22, 23, 24, 25]; vG2 = [26, 27, 28, 29]
vHS, vHSM = 30, 31
UR = lambda m: 32 + 4 * m
UI = lambda m: 64 + 4 * m
UM = lambda m: 96 + 4 * m
cL1 = 104; cC1 = 106; cPAr = 108; cPAi = 110; cR4 = 112; cRQ = 114; cGMr = 116; cGMi = 118; cMU = 120; cNU = 122
cAQ = 124; cBQ = 126
cLM = 128; cCM = 130; cPMa = 132; cPMb = 134; cMR4 = 136; cMRQ = 138; cMX = 140; cMY = 142
cMMU = 144; cMNU = 146; cMKA = 148; cMKW = 150; cMAQ = 152; cSGN = 154
cLOCR = 156; cLOCI = 158
ACC2 = lambda s, t: 160 + 8 * s + 4 * t
ACC8 = 192
CFV = 196
vT = 228
vC = [4, 5, 6, 7]
vRC = [15, 16]
vR8 = [17, 18]
vRH = [8, 9, 10, 11]
vO = [19, 20]; vO8 = 12
C8V = lambda ks: 32 + 4 * ks
HF = lambda b, s: 128 + 16 * b + 4 * s
C8B = lambda b: 228 + 4 * b
def CF(ks, t):
    f = 2 * ks + t
    return f"a[{4*f}:{4*f+3}]" if f < 64 else f"v[{CFV+4*(f-64)}:{CFV+4*(f-64)+3}]"
FA = lambda b, m: 52 * b + 4 * m
FAM = lambda b, m: 52 * b + 32 + 4 * m
FB = lambda b, n: 52 * b + 40 + 4 * n
def v4(r): return f"v[{r}:{r+3}]"
def a4(r): return f"a[{r}:{r+3}]"
def v2(r): return f"v[{r}:{r+1}]"

P = Prog()
E = P.e
nstamp = [0]
def stamp():
    if PROF:
        k = nstamp[0]; nstamp[0] += 1
        assert sSTAMP + 2 * k + 1 <= 101
        if AMP >= 0:
            if AMP == k: E(f"s_memrealtime s[{sSTAMP+2*k}:{sSTAMP+2*k+1}]")
        else:
            E(f"s_memtime s[{sSTAMP+2*k}:{sSTAMP+2*k+1}]")

BCLO = "op_sel:[0,0,0] op_sel_hi:[0,1,1]"
def pkfma(d, s0, s1, s2, sel0="n", sel1="n", neg0=None):
    m = {"n": (0, 1), "l": (0, 0), "h": (1, 1), "s": (1, 0)}
    t = f"v_pk_fma_f32 {v2(d)}, {v2(s0)}, {v2(s1)}, {v2(s2)} op_sel:[{m[sel0][0]},{m[sel1][0]},0] op_sel_hi:[{m[sel0][1]},{m[sel1][1]},1]"
    if neg0 in ("both", "lo"): t += " neg_lo:[1,0,0]"
    if neg0 in ("both", "hi"): t += " neg_hi:[1,0,0]"
    return t
def pkmul(d, s0, s1, sel0="n", sel1="n"):
    m = {"n": (0, 1), "l": (0, 0), "h": (1, 1), "s": (1, 0)}
    return f"v_pk_mul_f32 {v2(d)}, {v2(s0)}, {v2(s1)} op_sel:[{m[sel0][0]},{m[sel1][0]}] op_sel_hi:[{m[sel0][1]},{m[sel1][1]}]"
DPP8 = "row_ror:8 row_mask:0xf bank_mask:0xf"

E(f"""
s_cmp_ge_u32 s2, 256
s_cbranch_scc1 L_end
s_and_b32 s3, s2, 7
s_lshr_b32 s{sT0}, s2, 3
s_and_b32 s{sHD}, s3, 1
s_mul_i32 s{sT1}, s{sHD}, 72
s_load_dwordx16 s[64:79], s[0:1], s{sT1}
s_load_dwordx2 s[80:81], s[0:1], s{sT1} offset:64
s_load_dwordx4 s[84:87], s[0:1], 144
s_load_dwordx2 s[88:89], s[0:1], 160
s_getpc_b64 s[90:91]
""")
P.label("L_pc")
E(f"""
s_lshr_b32 s3, s3, 1
s_lshl_b32 s3, s3, 2
s_lshr_b32 s{sC}, s{sT0}, 3
s_add_u32 s{sC}, s{sC}, s3
s_and_b32 s{sJ}, s{sT0}, 7
s_lshr_b32 s{sHF}, s{sJ}, 2
s_and_b32 s{sE}, s{sJ}, 3
v_lshrrev_b32 v{vT}, 6, v0
v_and_b32 v{vL}, 63, v0
v_readfirstlane_b32 s{sW}, v{vT}
v_lshrrev_b32 v{vQ}, 4, v{vL}
v_and_b32 v{vI}, 15, v{vL}
""")
if PROF:
    E("s_memtime s[92:93]")
    E("s_memrealtime s[94:95]")
E(f"v_lshlrev_b32 v{vT+1}, 7, v0")
E(f"v_min_u32 v{vT+1}, CODE_LAST, v{vT+1}")
E(f"global_load_dword v{vT+27}, v{vT+1}, s[90:91]", tag="cpf")
a_, pos_, sw_, f_ = vT + 2, vT + 3, vT + 4, vT + 5
E(f"""
v_lshrrev_b32 v{a_}, 3, v{vL}
v_and_b32 v{pos_}, 7, v{vL}
v_lshrrev_b32 v{vT+6}, 1, v{a_}
v_xor_b32 v{sw_}, v{pos_}, v{vT+6}
v_lshlrev_b32 v{sw_}, 4, v{sw_}
v_lshrrev_b32 v{f_}, 2, v{a_}
v_lshlrev_b32 v{f_}, 5, v{f_}
v_and_b32 v{vT+7}, 1, v{a_}
v_lshl_add_u32 v{f_}, v{vT+7}, 4, v{f_}
v_and_b32 v{vT+7}, 1, v{vT+6}
v_add_u32 v{f_}, v{f_}, v{vT+7}
v_mul_u32_u24 v{f_}, {ROWB}, v{f_}
v_mul_u32_u24 v{vT+8}, {ROWB}, v{a_}
s_lshl_b32 s{sT0}, s{sC}, 7
s_lshl_b32 s{sT1}, s{sW}, 2
s_add_u32 s{sT0}, s{sT0}, s{sT1}
s_mul_i32 s{sT0}, s{sT0}, {ROWB}
s_add_u32 s{sT0}, s{sT0}, 4096
v_add3_u32 v{vX[0]}, v{f_}, v{sw_}, s{sT0}
v_xor_b32 v{vT+9}, 64, v{sw_}
s_add_u32 s{sT0}, s{sT0}, {64*ROWB-1024}
v_add3_u32 v{vX[1]}, v{f_}, v{vT+9}, s{sT0}
v_add_u32 v{vX[2]}, {2*ROWB-2048}, v{vX[0]}
v_add_u32 v{vX[3]}, {2*ROWB-2048}, v{vX[1]}
s_mul_i32 s{sT0}, s{sJ}, 72
s_lshl_b32 s{sT1}, s{sW}, 4
s_add_u32 s{sT1}, s{sT0}, s{sT1}
s_mul_i32 s{sT2}, s{sT1}, {ROWB}
s_add_u32 s{sT2}, s{sT2}, 4096
v_add3_u32 v{vW[0]}, v{vT+8}, v{sw_}, s{sT2}
s_add_u32 s{sT2}, s{sT2}, {8*ROWB-1024}
v_add3_u32 v{vW[1]}, v{vT+8}, v{vT+9}, s{sT2}
v_subrev_u32 v{vW[2]}, 2048, v{vW[0]}
v_subrev_u32 v{vW[3]}, 2048, v{vW[1]}
""")
E(f"""
v_add_u32 v{vT+10}, s{sT1}, v{vI}
v_lshlrev_b32 v{vT+10}, 1, v{vT+10}
v_and_b32 v{vT+11}, 7, v{vI}
v_add_u32 v{vT+11}, s{sT0}, v{vT+11}
v_lshlrev_b32 v{vT+11}, 1, v{vT+11}
s_and_b32 s{sT1}, s{sW}, 1
s_lshl_b32 s{sT1}, s{sT1}, 2
s_add_u32 s{sT0}, s{sT0}, s{sT1}
s_add_u32 s{sT0}, s{sT0}, 64
s_mul_i32 s{sT0}, s{sT0}, {ROWB}
s_add_u32 s{sT0}, s{sT0}, 4096
s_lshl_b32 s{sT1}, s{sW}, 1
v_add_u32 v{vT+12}, s{sT1}, v{vT+6}
v_xor_b32 v{vT+12}, v{pos_}, v{vT+12}
v_lshlrev_b32 v{vT+12}, 4, v{vT+12}
v_add3_u32 v{vM}, v{vT+8}, v{vT+12}, s{sT0}
s_lshl_b32 s{sM0X}, s{sW}, 12
s_add_u32 s{sM0W}, s{sM0X}, {L_W}
s_lshl_b32 s{sM0M}, s{sW}, 9
s_add_u32 s{sM0M}, s{sM0M}, {L_M}
s_mov_b32 s{sKB}, 0
s_waitcnt lgkmcnt(0)
""")
def mk_srd(d, p, size, shift=0):
    if shift:
        E(f"s_sub_u32 s{d}, s{p}, {shift}\ns_subb_u32 s{d+1}, s{p+1}, 0")
    else:
        E(f"s_mov_b32 s{d}, s{p}\ns_mov_b32 s{d+1}, s{p+1}")
    E(f"s_mov_b32 s{d+2}, {size+shift}\ns_mov_b32 s{d+3}, 0x20000")
mk_srd(sSRD_X, 64, XBYTES, 4096)
mk_srd(sSRD_BR, 70, WBYTES, 4096)
mk_srd(sSRD_BI, 72, WBYTES, 4096)
E(f"""
s_cmp_lt_u32 s{sW}, 2
s_cselect_b32 s{sSRD_MX}, s{sSRD_BR}, s{sSRD_BI}
s_cselect_b32 s{sSRD_MX+1}, s{sSRD_BR+1}, s{sSRD_BI+1}
s_mov_b32 s{sSRD_MX+2}, {WBYTES+4096}
s_mov_b32 s{sSRD_MX+3}, 0x20000
""")
pL = 140
pD = 156
E(f"global_load_ushort v{pL+0}, v{vT+10}, s[66:67]")
E(f"global_load_ushort v{pL+1}, v{vT+10}, s[68:69]")
E(f"global_load_ushort v{pL+2}, v{vT+10}, s[78:79]")
E(f"global_load_ushort v{pL+3}, v{vT+11}, s[66:67] offset:128")
E(f"global_load_ushort v{pL+4}, v{vT+11}, s[68:69] offset:128")
E(f"global_load_ushort v{pL+5}, v{vT+11}, s[78:79] offset:128")

def dma_stage(slot, tag):
    g = []
    g.append([Ins(f"s_add_u32 m0, s{sM0X}, {slot*16384}"), Ins(f"buffer_load_dwordx4 v{vX[0]}, {srd(sSRD_X)}, s{sKB} offen lds", tag)])
    for k in (1, 2, 3):
        g.append([Ins(f"buffer_load_dwordx4 v{vX[k]}, {srd(sSRD_X)}, s{sKB} offen offset:{1024*k} lds", tag)])
    g.append([Ins(f"s_add_u32 m0, s{sM0W}, {slot*16384}"), Ins(f"buffer_load_dwordx4 v{vW[0]}, {srd(sSRD_BR)}, s{sKB} offen lds", tag)])
    g.append([Ins(f"buffer_load_dwordx4 v{vW[1]}, {srd(sSRD_BR)}, s{sKB} offen offset:1024 lds", tag)])
    g.append([Ins(f"buffer_load_dwordx4 v{vW[2]}, {srd(sSRD_BI)}, s{sKB} offen offset:2048 lds", tag)])
    g.append([Ins(f"buffer_load_dwordx4 v{vW[3]}, {srd(sSRD_BI)}, s{sKB} offen offset:3072 lds", tag)])
    g.append([Ins(f"s_add_u32 m0, s{sM0M}, {slot*2048}"), Ins("s_mov_b32 exec_hi, 0"),
              Ins(f"buffer_load_dwordx4 v{vM}, {srd(sSRD_MX)}, s{sKB} offen lds", tag), Ins("s_mov_b32 exec_hi, -1"),
              Ins(f"s_add_u32 s{sKB}, s{sKB}, 128")])
    return g
def flat(g):
    o = []
    for x in g: o += x if isinstance(x, list) else [x]
    return o

P.add(flat(dma_stage(0, "st0")))
mk_srd(sSRD_WS, 88, WS_SIZE)
mk_srd(sSRD_DBG, 86, 256)
E(f"""
s_lshl_b32 s{sT0}, s{sHD}, 3
s_add_u32 s{sT0}, s{sT0}, s{sJ}
s_mul_i32 s{sT0}, s{sT0}, 12288
s_add_u32 s{sSRD_AG}, s88, s{sT0}
s_addc_u32 s{sSRD_AG+1}, s89, 0
s_mov_b32 s{sSRD_AG+2}, 12288
s_mov_b32 s{sSRD_AG+3}, 0x20000
s_mul_i32 s{sT1}, s{sC}, 768
s_add_u32 s{sT0}, s{sT0}, s{sT1}
s_lshl_b32 s{sT2}, s{sW}, 7
v_lshlrev_b32 v{vT+13}, 3, v{vI}
v_add_u32 v{vT+13}, s{sT2}, v{vT+13}
v_and_b32 v{vT+14}, 7, v{vI}
v_lshlrev_b32 v{vT+14}, 5, v{vT+14}
v_lshrrev_b32 v{vT+15}, 3, v{vI}
v_lshl_add_u32 v{vT+16}, v{vQ}, 2, v{vT+13}
v_add_u32 v{vPUB}, s{sT0}, v{vT+16}
s_lshl_b32 s{sT2}, s{sW}, 3
s_add_u32 s{sT2}, s{sT2}, s{sT0}
s_add_u32 s{sT2}, s{sT2}, 512
v_lshl_add_u32 v{vT+16}, v{vT+15}, 2, v{vT+14}
v_add_u32 v{vT+16}, s{sT2}, v{vT+16}
v_cmp_eq_u32 vcc, 2, v{vQ}
v_cndmask_b32 v{vPUB}, v{vPUB}, v{vT+16}, vcc
s_lshl_b32 s{sT0}, s{sHD}, 4
s_add_u32 s{sT0}, s{sT0}, s{sC}
s_mul_i32 s{sHSRC}, s{sT0}, {2*HHALF}
s_add_u32 s{sHSRC}, s{sHSRC}, {WS_H}
s_lshl_b32 s{sT0}, s{sT0}, 7
s_add_u32 s{sT0}, s{sT0}, {WS_FLAG}
s_mov_b32 s{sM08}, s{sT0}
s_lshl_b32 s{sT2}, s{sJ}, 4
s_add_u32 s{sT0}, s{sT0}, s{sT2}
s_lshl_b32 s{sT2}, s{sW}, 2
s_add_u32 s{sT0}, s{sT0}, s{sT2}
v_mov_b32 v{vT+16}, s{sT0}
v_cmp_eq_u32 vcc, 48, v{vL}
v_cndmask_b32 v{vPUB}, v{vPUB}, v{vT+16}, vcc
v_mov_b32 v{vT+16}, 0x7ffffff0
v_cmp_lt_u32 vcc, 48, v{vL}
v_cndmask_b32 v{vPUB}, v{vPUB}, v{vT+16}, vcc
v_mov_b32 v{vT+17}, -1
buffer_store_dword v{vT+17}, v{vPUB}, {srd(sSRD_WS)}, 0 offen sc1
""", tag="clr")
sFLAGB = 3
E(f"s_mov_b32 s{sFLAGB}, s{sM08}")
P.add(flat(dma_stage(1, "st1")))
P.add(flat(dma_stage(2, "st2")))
E(f"""
s_sub_u32 s{sT1}, s{sC}, 1
v_sub_u32 v{vT+16}, s{sT1}, v{vQ}
v_mul_i32_i24 v{vT+16}, 768, v{vT+16}
v_add_u32 v{vG1[0]}, v{vT+16}, v{vT+13}
v_lshl_add_u32 v{vT+17}, v{vT+15}, 4, v{vT+14}
v_add_u32 v{vT+17}, 512, v{vT+17}
v_add_u32 v{vG2[0]}, v{vT+16}, v{vT+17}
""")
for k in (1, 2, 3):
    E(f"v_subrev_u32 v{vG1[k]}, {3072*k}, v{vG1[0]}\nv_subrev_u32 v{vG2[k]}, {3072*k}, v{vG2[0]}")
E(f"""
v_lshrrev_b32 v{vT+16}, 1, v{vI}
v_xor_b32 v{vT+16}, v{vQ}, v{vT+16}
v_lshlrev_b32 v{vT+16}, 4, v{vT+16}
v_lshl_add_u32 v{vRA[0]}, v{vI}, 7, v{vT+16}
v_xor_b32 v{vRA[1]}, 64, v{vRA[0]}
v_add_u32 v{vRAM[0]}, s{sM0X}, v{vRA[0]}
v_add_u32 v{vRAM[1]}, s{sM0X}, v{vRA[1]}
v_add_u32 v{vRB[0]}, s{sM0W}, v{vRA[0]}
v_add_u32 v{vRB[1]}, s{sM0W}, v{vRA[1]}
v_add_u32 v{vRM[0]}, {L_M}, v{vRA[0]}
v_add_u32 v{vRM[1]}, {L_M}, v{vRA[1]}
""")
E(f"""
v_and_b32 v{vT+16}, 3, v{vI}
v_lshlrev_b32 v{vT+16}, 4, v{vT+16}
v_lshrrev_b32 v{vT+17}, 1, v{vQ}
v_lshl_add_u32 v{vT+16}, v{vT+17}, 6, v{vT+16}
v_bfe_u32 v{vT+17}, v{vI}, 2, 1
v_lshl_add_u32 v{vT+16}, v{vT+17}, 8, v{vT+16}
v_and_b32 v{vT+17}, 1, v{vQ}
v_lshl_add_u32 v{vT+16}, v{vT+17}, 9, v{vT+16}
s_mul_i32 s{sT0}, s{sJ}, 9
s_lshl_b32 s{sT1}, s{sW}, 1
s_add_u32 s{sT1}, s{sT1}, s{sT0}
v_add_u32 v{vT+17}, s{sT1}, v{vT+15}
v_lshrrev_b32 v{vT+18}, 1, v{vT+17}
v_lshlrev_b32 v{vT+18}, 11, v{vT+18}
v_and_b32 v{vT+17}, 1, v{vT+17}
v_lshl_add_u32 v{vT+18}, v{vT+17}, 7, v{vT+18}
v_add3_u32 v{vHS}, v{vT+16}, v{vT+18}, s{sHSRC}
s_add_u32 s{sT0}, s{sT0}, 8
s_lshr_b32 s{sT1}, s{sT0}, 1
s_lshl_b32 s{sT1}, s{sT1}, 11
s_and_b32 s{sT0}, s{sT0}, 1
s_lshl_b32 s{sT0}, s{sT0}, 7
s_add_u32 s{sT0}, s{sT0}, s{sT1}
s_and_b32 s{sT1}, s{sW}, 1
s_lshl_b32 s{sT1}, s{sT1}, 10
s_add_u32 s{sT0}, s{sT0}, s{sT1}
s_lshr_b32 s{sT1}, s{sW}, 1
s_mul_i32 s{sT1}, s{sT1}, {HHALF}
s_add_u32 s{sT0}, s{sT0}, s{sT1}
s_add_u32 s{sT0}, s{sT0}, s{sHSRC}
v_mul_u32_u24 v{vT+17}, 73728, v{vT+15}
v_add3_u32 v{vHSM}, v{vT+16}, v{vT+17}, s{sT0}
s_mul_i32 s{sT0}, s{sHF}, {HHALF}
s_add_u32 s{sHSRC}, s{sHSRC}, s{sT0}
""")
mk_srd(sSRD_CR, 74, WBYTES, 4096)
mk_srd(sSRD_CI, 76, WBYTES, 4096)
mk_srd(sSRD_OUT, 84, OUTB)
E(f"""
s_cmp_lt_u32 s{sW}, 2
s_cselect_b32 s{sSRD_C8}, s{sSRD_CR}, s{sSRD_CI}
s_cselect_b32 s{sSRD_C8+1}, s{sSRD_CR+1}, s{sSRD_CI+1}
s_mov_b32 s{sSRD_C8+2}, {WBYTES+4096}
s_mov_b32 s{sSRD_C8+3}, 0x20000
""")
E(f"""
s_mul_i32 s{sT0}, s{sE}, 288
s_lshl_b32 s{sT1}, s{sW}, 6
v_lshlrev_b32 v{vT+16}, 1, v{vI}
v_add_u32 v{vT+16}, s{sT0}, v{vT+16}
v_add_u32 v{vT+17}, s{sT1}, v{vT+16}
global_load_ushort v{pD}, v{vT+17}, s[80:81]
global_load_ushort v{pD+1}, v{vT+17}, s[80:81] offset:32
global_load_ushort v{pD+2}, v{vT+16}, s[80:81] offset:256
""")
kSW, kSW4, kA8, kF = 250, 251, 252, 253
E(f"""
v_mov_b32 v{kSW}, v{sw_}
v_mov_b32 v{kSW4}, v{vT+9}
v_mov_b32 v{kA8}, v{vT+8}
""")
vV8, vXS0, vXS1, vXS8 = 254, 246, 247, 248
E(f"""
s_mul_i32 s{sT0}, s{sE}, 144
s_and_b32 s{sT1}, s{sW}, 1
s_lshl_b32 s{sT2}, s{sT1}, 3
s_add_u32 s{sT0}, s{sT0}, s{sT2}
s_add_u32 s{sT0}, s{sT0}, 128
s_mul_i32 s{sT0}, s{sT0}, {ROWB}
s_add_u32 s{sT0}, s{sT0}, 4096
s_lshl_b32 s{sT2}, s{sT1}, 6
v_xor_b32 v{vT+16}, s{sT2}, v{kSW}
v_add3_u32 v{vV8}, v{kA8}, v{vT+16}, s{sT0}
s_lshr_b32 s{sT2}, s{sW}, 1
s_mul_i32 s{sM08}, s{sT2}, 18432
s_lshl_b32 s{sT0}, s{sT1}, 10
s_add_u32 s{sM08}, s{sM08}, s{sT0}
s_add_u32 s{sM08}, s{sM08}, {L_C8}
""")
E(f"""
v_lshlrev_b32 v{vT+16}, 5, v{vQ}
v_bfe_u32 v{vT+17}, v{vL}, 2, 1
v_lshl_add_u32 v{vT+16}, v{vT+17}, 4, v{vT+16}
v_bfe_u32 v{vT+17}, v{vL}, 3, 1
v_add_u32 v{vT+16}, v{vT+16}, v{vT+17}
v_and_b32 v{vT+17}, 1, v{vQ}
v_xor_b32 v{vT+17}, s{sT1}, v{vT+17}
v_lshl_add_u32 v{vT+14}, v{vT+17}, 1, v{vT+16}
v_xor_b32 v{vT+17}, 1, v{vT+17}
v_lshl_add_u32 v{vT+15}, v{vT+17}, 1, v{vT+16}
v_mul_u32_u24 v{vT+14}, {ROWB}, v{vT+14}
v_mul_u32_u24 v{vT+15}, {ROWB}, v{vT+15}
v_and_b32 v{vT+16}, 3, v{vL}
v_lshlrev_b32 v{vT+16}, 4, v{vT+16}
s_mul_i32 s{sT0}, s{sC}, {128*ROWB}
s_mul_i32 s{sT2}, s{sE}, 288
s_add_u32 s{sT0}, s{sT0}, s{sT2}
s_add_u32 s{sT0}, s{sT0}, 4096
s_lshl_b32 s{sT2}, s{sW}, 6
s_add_u32 s{sT2}, s{sT2}, s{sT0}
v_add3_u32 v{vXS0}, v{vT+14}, v{vT+16}, s{sT2}
v_add3_u32 v{vXS1}, v{vT+15}, v{vT+16}, s{sT2}
v_and_b32 v{vT+16}, 16, v{vT+16}
s_add_u32 s{sT0}, s{sT0}, 256
v_add3_u32 v{vXS8}, v{vT+14}, v{vT+16}, s{sT0}
""")
E(f"""
s_lshr_b32 s{sT0}, s{sW}, 1
s_lshl_b32 s{sT1}, s{sHF}, 1
s_add_u32 s{sT2}, s{sT1}, s{sT0}
s_xor_b32 s{sT0}, s{sT0}, 1
s_add_u32 s{sT1}, s{sT1}, s{sT0}
s_mul_i32 s{sXSO}, s{sT2}, {4*ROWB}
s_mul_i32 s{sXSO+1}, s{sT1}, {4*ROWB}
s_mul_i32 s{sSO}, s{sT2}, {4*4608}
s_mul_i32 s{sSO+4}, s{sT1}, {4*4608}
""")
for sh in range(2):
    for r in (1, 2, 3):
        E(f"s_add_u32 s{sSO+4*sh+r}, s{sSO+4*sh}, {(16*(r&1)+(r>>1))*4608}")
E(f"s_mov_b32 s{sK1}, 73728\ns_mov_b32 s{sK2}, {HHALF}\ns_mov_b32 s{sK3}, {HHALF+73728}")
E(f"s_mul_i32 s{sM0C}, s{sW}, 24576")

K = []
def k(t):
    for line in t.strip().split("\n"):
        if line.strip(): K.append(line.strip())
LOG2E = "0x3fb8aa3b"; INV2PI = "0x3e22f983"
t0, t1, t2, t3, t4, t5 = [vT + n for n in range(6)]
zR = [vT + 6, vT + 8]; zA = [vT + 7, vT + 9]
fQ, fN = vT + 10, vT + 11
def power(dr, di, st, n):
    src = n if isinstance(n, str) else f"v{n}"
    k(f"""
    v_mul_f32 v{t0}, {src}, v{zR[st]}
    v_mul_f32 v{t1}, {src}, v{zA[st]}
    v_exp_f32 v{t0}, v{t0}
    v_fract_f32 v{t1}, v{t1}
    v_cos_f32 v{t2}, v{t1}
    v_sin_f32 v{t1}, v{t1}
    v_mul_f32 v{dr}, v{t0}, v{t2}
    v_mul_f32 v{di}, v{t0}, v{t1}
    """)
def cmul(dr, di, ar, ai, br, bi):
    k(f"""
    v_mul_f32 v{dr}, v{ar}, v{br}
    v_mul_f32 v{di}, v{ar}, v{bi}
    v_fma_f32 v{dr}, -v{ai}, v{bi}, v{dr}
    v_fma_f32 v{di}, v{ai}, v{br}, v{di}
    """)
def fl(x):
    import struct
    return "0x%08x" % struct.unpack("<I", struct.pack("<f", float(x)))[0]
for st, (cl, cc) in enumerate(((cL1, cC1), (cLM, cCM))):
    pr, pi, pd = pL + 3 * st, pL + 3 * st + 1, pL + 3 * st + 2
    k(f"""
    v_lshlrev_b32 v{pr}, 16, v{pr}
    v_lshlrev_b32 v{pi}, 16, v{pi}
    v_lshlrev_b32 v{pd}, 16, v{pd}
    v_mul_f32 v{pd}, {LOG2E}, v{pd}
    v_exp_f32 v{pd}, v{pd}
    v_max_f32 v{t4}, |v{pr}|, |v{pi}|
    v_cvt_pk_bf16_f32 v{pd}, v{pd}, v{pd}
    v_rcp_f32 v{t5}, v{t4}
    v_lshlrev_b32 v{pd}, 16, v{pd}
    v_mul_f32 v{zR[st]}, v{pd}, v{pr}
    v_mul_f32 v{zA[st]}, v{pd}, v{pi}
    v_mul_f32 v{zR[st]}, {LOG2E}, v{zR[st]}
    v_mul_f32 v{zA[st]}, {INV2PI}, v{zA[st]}
    v_exp_f32 v{t0}, v{zR[st]}
    v_rndne_f32 v{t1}, v{zA[st]}
    v_sub_f32 v{zA[st]}, v{zA[st]}, v{t1}
    v_cos_f32 v{t2}, v{zA[st]}
    v_sin_f32 v{t1}, v{zA[st]}
    v_mul_f32 v{cl}, v{t0}, v{t2}
    v_mul_f32 v{cl+1}, v{t0}, v{t1}
    v_mul_f32 v{pr}, v{pr}, v{t5}
    v_mul_f32 v{pi}, v{pi}, v{t5}
    v_mul_f32 v{t0}, v{pr}, v{pr}
    v_fma_f32 v{t0}, v{pi}, v{pi}, v{t0}
    v_mul_f32 v{t0}, v{t0}, v{t4}
    v_rcp_f32 v{t0}, v{t0}
    v_add_f32 v{t1}, -1.0, v{cl}
    v_mul_f32 v{t2}, v{t1}, v{pr}
    v_fma_f32 v{t2}, v{cl+1}, v{pi}, v{t2}
    v_mul_f32 v{t3}, v{cl+1}, v{pr}
    v_fma_f32 v{t3}, -v{t1}, v{pi}, v{t3}
    v_add_f32 v{t0}, v{t0}, v{t0}
    v_mul_f32 v{cc}, v{t2}, v{t0}
    v_mul_f32 v{cc+1}, v{t3}, v{t0}
    """)
k(f"""
v_cvt_f32_u32 v{fQ}, v{vQ}
v_cmp_gt_u32 vcc, 8, v{vI}
v_mov_b32 v{t0}, 1.0
v_cndmask_b32 v{cSGN}, v{t0}, -1.0, vcc
""".replace("v_cndmask_b32 v%d, v%d, -1.0, vcc" % (cSGN, t0), "v_cndmask_b32_e64 v%d, v%d, -1.0, vcc" % (cSGN, t0)))
u0, u1 = vT + 12, vT + 13
k(f"v_mul_f32 v{fN}, {fl(-32)}, v{fQ}\nv_add_f32 v{fN}, {fl(112)}, v{fN}")
power(u0, u1, 0, fN); cmul(cPAr, cPAi, u0, u1, cC1, cC1 + 1)
k(f"v_add_f32 v{fN}, {fl(-16)}, v{fN}")
power(u0, u1, 0, fN); cmul(cPAr + 1, cPAi + 1, u0, u1, cC1, cC1 + 1)
fW = vT + 14
k(f"v_cvt_f32_u32 v{fW}, s{sW}\nv_mul_f32 v{fW}, 4.0, v{fW}")
k(f"v_sub_f32 v{fN}, v{fN}, v{fW}\nv_add_f32 v{fN}, {fl(28)}, v{fN}")
power(u0, u1, 1, fN); cmul(cPMa, cPMb, u0, u1, cCM, cCM + 1)
k(f"v_add_f32 v{fN}, {fl(-16)}, v{fN}")
power(u0, u1, 1, fN); cmul(cPMa + 1, cPMb + 1, u0, u1, cCM, cCM + 1)
k(f"""
v_mul_f32 v{cPMb}, v{cSGN}, v{cPMb}
v_mul_f32 v{cPMb+1}, v{cSGN}, v{cPMb+1}
v_mul_f32 v{cLM+1}, v{cSGN}, v{cLM+1}
v_mul_f32 v{cCM+1}, v{cSGN}, v{cCM+1}
""")
power(cR4, cR4 + 1, 0, fl(512)); power(cMR4, cMR4 + 1, 1, fl(512))
k(f"v_mul_f32 v{fN}, {fl(128)}, v{fQ}")
power(cRQ, cRQ + 1, 0, fN); power(cMRQ, cMRQ + 1, 1, fN)
power(cMU, cMU + 1, 0, fl(16)); power(cNU, cNU + 1, 0, fl(32))
power(cMMU, cMMU + 1, 1, fl(16)); power(cMNU, cMNU + 1, 1, fl(32)); power(cMKA, cMKA + 1, 1, "4.0"); power(cMKW, cMKW + 1, 1, fW)
for r in (cMMU, cMNU, cMKA, cMKW):
    k(f"v_mul_f32 v{r+1}, v{cSGN}, v{r+1}")
k(f"v_mul_f32 v{fN}, {fl(32)}, v{fQ}")
power(cGMr, cGMi, 0, fN)
k(f"v_add_f32 v{fN}, {fl(16)}, v{fN}")
power(cGMr + 1, cGMi + 1, 0, fN)
k(f"v_add_f32 v{fN}, v{fN}, v{fW}")
k(f"v_cmp_gt_u32 vcc, 8, v{vI}")
for b in (1, 0):
    power(u0, u1, 1, fN)
    k(f"""
    v_cndmask_b32 v{cMX+b}, v{u1}, v{u0}, vcc
    v_cndmask_b32_e64 v{cMY+b}, v{u0}, -v{u1}, vcc
    """)
    if b: k(f"v_add_f32 v{fN}, {fl(-16)}, v{fN}")
k(f"""
v_cmp_eq_u32 vcc, 3, v{vQ}
v_cndmask_b32 v{cAQ+1}, 0, v{cNU+1}, vcc
v_cndmask_b32 v{cMAQ+1}, 0, v{cMNU+1}, vcc
v_cndmask_b32 v{cAQ}, 1.0, v{cNU}, vcc
v_cndmask_b32 v{cMAQ}, 1.0, v{cMNU}, vcc
v_cmp_lt_u32 vcc, 1, v{vQ}
v_cndmask_b32 v{cAQ}, 0, v{cAQ}, vcc
v_cndmask_b32 v{cMAQ}, 0, v{cMAQ}, vcc
v_and_b32 v{t0}, 1, v{vQ}
v_cvt_f32_u32 v{cBQ}, v{t0}
""")

def g1_reads(n):
    kc, s, b = n >> 1, n & 1, n & 1
    sl = kc % 3
    r = []
    r.append(f"ds_read_b128 {a4(FB(b,0))}, v{vRB[s]} offset:{sl*16384}")
    r.append(f"ds_read_b128 {a4(FA(b,0))}, v{vRA[s]} offset:{sl*16384}")
    r.append(f"ds_read_b128 {a4(FB(b,1))}, v{vRB[s]} offset:{sl*16384+2048}")
    for m in range(1, 8):
        r.append(f"ds_read_b128 {a4(FA(b,m))}, v{vRA[s]} offset:{sl*16384+m*2048}")
    r.append(f"ds_read_b128 {a4(FB(b,2))}, v{vRM[s]} offset:{sl*2048}")
    for m in range(2):
        r.append(f"ds_read_b128 {a4(FAM(b,m))}, v{vRAM[s]} offset:{sl*16384+m*2048}")
    return r
def g1_mfma(n):
    b = n & 1
    r = []
    def mf(acc, a, bb):
        c = "0" if n == 0 else v4(acc)
        r.append(f"v_mfma_f32_16x16x32_bf16 {v4(acc)}, {a4(a)}, {a4(bb)}, {c}")
    for m in range(8):
        mf(UR(m), FA(b, m), FB(b, 0)); mf(UI(m), FA(b, m), FB(b, 1))
    for m in range(2):
        mf(UM(m), FAM(b, m), FB(b, 2))
    return r

extra = []
for t in range(9):
    extra.append([Ins(f"s_add_u32 m0, s{sM08}, {t*2048}"), Ins(f"s_mov_b32 s{sT0}, {t*128}"),
                  Ins(f"buffer_load_dwordx4 v{vV8}, {srd(sSRD_C8)}, s{sT0} offen lds", "c8")])
xs = []
for s in range(5):
    vo = [vXS0, vXS1, vXS0, vXS1, vXS8][s]
    so = sXSO + (s >> 1 if s < 4 else 0)
    xs.append([Ins(f"s_mul_i32 s{sT0}, s{sW}, 5120"), Ins(f"s_add_u32 m0, s{sT0}, {L_XS + s*1024}"),
               Ins(f"buffer_load_dwordx4 v{vo}, {srd(sSRD_X)}, s{so} offen lds", "xs")])
extra = xs + extra

if PROF: E('s_mov_b32 s74, s92\ns_mov_b32 s75, s94')
stamp()
P.wait_vm(["st0", "clr"])
E("s_barrier")
stamp()
E(f"""
s_lshr_b32 s{sT0}, s2, 3
s_and_b32 s{sT0}, s{sT0}, 15
s_lshl_b32 s{sT1}, s{sHD}, 5
s_add_u32 s{sT0}, s{sT0}, s{sT1}
s_lshl_b32 s{sT0}, s{sT0}, 2
s_add_u32 s{sT0}, s{sT0}, 64
v_mov_b32 v{vT+16}, s{sT0}
v_mov_b32 v{vT+17}, 0x7ffffff0
v_cmp_eq_u32 vcc, 0, v0
v_cndmask_b32 v{vT+16}, v{vT+17}, v{vT+16}, vcc
v_mov_b32 v{vT+17}, 1
buffer_atomic_add v{vT+17}, v{vT+16}, {srd(sSRD_DBG)}, 0 offen sc1
""", tag="cnt")
P.add(g1_reads(0))
Kq = list(K)
pend_dma = []
for n in range(18):
    kc = n >> 1
    side = []
    if n & 1:
        P.wait_ds()
        if kc + 1 <= 8:
            P.wait_vm(f"st{kc+1}")
            E("s_barrier")
        if kc + 3 <= 8:
            pend_dma = dma_stage(kc % 3, f"st{kc+3}")
        elif kc + 3 == 9:
            pend_dma = extra[:7]
        elif kc + 3 == 10:
            pend_dma = extra[7:]
    rd = g1_reads(n + 1) if n + 1 < 18 else []
    mf = g1_mfma(n)
    body = []
    nd = (len(pend_dma) + 1) // 2 if n & 1 else len(pend_dma)
    dm = pend_dma[:nd]; pend_dma = pend_dma[nd:]
    for gi, m in enumerate(mf):
        body.append(m)
        if gi < len(rd): body.append(rd[gi])
        if gi % 4 == 1 and dm: body += dm.pop(0)
        nk = 1 if gi < len(rd) else 2
        for _ in range(nk):
            if Kq and n >= 1: body.append(Kq.pop(0))
    for d in dm: body += d
    P.add(body)
P.add(Kq)
stamp()

def U(s): return (UR(s >> 1) + 2 * (s & 1), UI(s >> 1) + 2 * (s & 1))
def UMs(s): return UM(s >> 1) + 2 * (s & 1)
eA, eB, eC, eD = vT, vT + 2, vT + 4, vT + 6
mE, mT = vT + 8, vT + 10
p1 = []
er, ei = U(0)
ta, tb = eA, eB
for s in range(1, 16):
    ur, ui = U(s)
    p1 += [pkfma(ta, cL1, er, ur, "l"), pkfma(tb, cL1, ei, ui, "l"), pkfma(tb, cL1, er, tb, "h"), pkfma(ta, cL1, ei, ta, "h", neg0="both")]
    er, ei = ta, tb
    ta, tb = (eC, eD) if ta == eA else (eA, eB)
ER, EI = er, ei
pm = []
me = UMs(0)
mt = mE
for s in range(1, 4):
    pm += [pkfma(mt, cLM, me, UMs(s), "l"), f"v_fmac_f32_dpp v{mt}, v{me}, v{cLM+1} {DPP8}", f"v_fmac_f32_dpp v{mt+1}, v{me+1}, v{cLM+1} {DPP8}"]
    me = mt
    mt = mT if mt == mE else mE
ME = me
gM, gM2 = vT + 12, vT + 13
pm += [f"v_mul_f32 v{gM}, v{cPMa}, v{ME}", f"v_fmac_f32_dpp v{gM}, v{ME}, v{cPMb} {DPP8}",
       f"v_fmac_f32 v{gM}, v{cPMa+1}, v{ME+1}", f"v_fmac_f32_dpp v{gM}, v{ME+1}, v{cPMb+1} {DPP8}",
       f"v_mov_b32 v{gM2}, v{gM}", "s_nop 0", "s_nop 0", f"v_permlane16_swap_b32 v{gM}, v{gM2}", f"v_add_f32 v{gM}, v{gM}, v{gM2}"]
P.add(interleave(p1, pm, start=2, every=3))
GR, GI = ta, tb
P.add([pkmul(GR, cPAr, ER), pkmul(GI, cPAr, EI), pkfma(GR, cPAi, EI, GR, neg0="both"), pkfma(GI, cPAi, ER, GI)])
E(f"""
v_add_f32 v{GR}, v{GR}, v{GR+1}
v_add_f32 v{GI}, v{GI}, v{GI+1}
v_permlane16_swap_b32 v{GR}, v{GI}
v_add_f32 v{GR}, v{GR}, v{GI}
v_permlane32_swap_b32 v{GR}, v{gM}
v_add_f32 v{GR}, v{GR}, v{gM}
v_min_u32 v{GR}, -2, v{GR}
s_mov_b32 exec_hi, 0xffff
""")
E(f"buffer_store_dword v{GR}, v{vPUB}, {srd(sSRD_WS)}, 0 offen sc1", tag="pub")
E("s_mov_b32 exec_hi, -1")
stamp()

cchk = vT + 26
E(f"""
v_lshlrev_b32 v{cchk}, 2, v{vI}
s_lshl_b32 s{sT0}, s{sHD}, 7
s_add_u32 s{sT0}, s{sT0}, 64
v_add_u32 v{vT+25}, s{sT0}, v{cchk}
""")
mP = vT + 14
scr = vT + 16
E(pkmul(mP, cCM, ME, "l"))
E(f"""
v_fmac_f32_dpp v{mP}, v{ME}, v{cCM+1} {DPP8}
v_fmac_f32_dpp v{mP+1}, v{ME+1}, v{cCM+1} {DPP8}
v_lshlrev_b32 v{scr}, 3, v0
v_add_u32 v{scr}, {L_SCR}, v{scr}
ds_write_b64 v{scr}, {v2(mP)}
""")
P.wait_vm(["c8", "xs"])
P.wait_ds()
E("s_barrier")
E(f"""
s_mul_i32 s{sT0}, s{sE}, 144
s_lshl_b32 s{sT1}, s{sW}, 5
s_add_u32 s{sT0}, s{sT0}, s{sT1}
s_mul_i32 s{sT0}, s{sT0}, {ROWB}
s_add_u32 s{sT0}, s{sT0}, 4096
v_add3_u32 v{vC[0]}, v{kA8}, v{kSW}, s{sT0}
s_add_u32 s{sT0}, s{sT0}, {8*ROWB-1024}
v_add3_u32 v{vC[1]}, v{kA8}, v{kSW4}, s{sT0}
v_add_u32 v{vC[2]}, {16*ROWB-2048}, v{vC[0]}
v_add_u32 v{vC[3]}, {16*ROWB-2048}, v{vC[1]}
v_add_u32 v{vRC[0]}, s{sM0C}, v{vRA[0]}
v_add_u32 v{vRC[1]}, s{sM0C}, v{vRA[1]}
v_add_u32 v{vR8[0]}, {L_C8}, v{vRA[0]}
v_add_u32 v{vR8[1]}, {L_C8}, v{vRA[1]}
""")
def c_dma(pc):
    sr = sSRD_CR if pc < 9 else sSRD_CI
    g = [[Ins(f"s_add_u32 m0, s{sM0C}, {(pc%6)*4096}"), Ins(f"s_mov_b32 s{sKB}, {(pc%9)*128}"),
          Ins(f"buffer_load_dwordx4 v{vC[0]}, {srd(sr)}, s{sKB} offen lds", f"c{pc}_")]]
    for kk in (1, 2, 3):
        g.append([Ins(f"buffer_load_dwordx4 v{vC[kk]}, {srd(sr)}, s{sKB} offen offset:{1024*kk} lds", f"c{pc}_")])
    return g
def c_read(pc):
    r = [("wvm", f"c{pc}_")]
    for s in range(2):
        for t in range(2):
            r.append(f"ds_read_b128 {CF(2*pc+s, t)}, v{vRC[s]} offset:{(pc%6)*4096+t*2048}")
    return r
E(f"buffer_load_dword v{cchk}, v{vT+25}, {srd(sSRD_DBG)}, 0 offen sc1", tag="cchk")
for pc in range(6): P.add(flat(c_dma(pc)))

e0, e1, e2, e3 = vT + 16, vT + 18, vT + 20, vT + 22
rdA = vT + 24
E(f"""
v_lshlrev_b32 v{rdA}, 3, v{vL}
v_add_u32 v{rdA}, {L_SCR}, v{rdA}
ds_read_b64 {v2(e0)}, v{rdA}
ds_read_b64 {v2(e1)}, v{rdA} offset:512
ds_read_b64 {v2(e2)}, v{rdA} offset:1024
ds_read_b64 {v2(e3)}, v{rdA} offset:1536
""")
def mx_axpy(dst, cst, x):
    return [pkfma(dst, cst, x, dst, "l"), f"v_fmac_f32_dpp v{dst}, v{x}, v{cst+1} {DPP8}", f"v_fmac_f32_dpp v{dst+1}, v{x+1}, v{cst+1} {DPP8}"]
def mx_axpy1(dst, cst, x):
    return [f"v_fmac_f32 v{dst}, v{cst}, v{x}", f"v_fmac_f32_dpp v{dst}, v{x}, v{cst+1} {DPP8}"]
P.add([pkmul(GR, cC1, ER, "l"), pkmul(GI, cC1, EI, "l"), pkfma(GR, cC1, EI, GR, "h", neg0="both"), pkfma(GI, cC1, ER, GI, "h")])
Fr, Fi, Yr, Yi = ER, EI, ER + 1, EI + 1
E(f"""
v_fma_f32 v{Fr}, v{cMU}, v{GR}, v{GR+1}
v_fma_f32 v{Fi}, v{cMU}, v{GI}, v{GI+1}
v_fma_f32 v{Fr}, -v{cMU+1}, v{GI}, v{Fr}
v_fma_f32 v{Fi}, v{cMU+1}, v{GR}, v{Fi}
v_mov_b32 v{Yr}, v{Fr}
v_mov_b32 v{Yi}, v{Fi}
v_permlane16_swap_b32 v{Fr}, v{Yr}
v_permlane16_swap_b32 v{Fi}, v{Yi}
v_fma_f32 v{Yr}, v{cNU}, v{Fr}, v{Yr}
v_fma_f32 v{Yi}, v{cNU}, v{Fi}, v{Yi}
v_fma_f32 v{Yr}, -v{cNU+1}, v{Fi}, v{Yr}
v_fma_f32 v{Yi}, v{cNU+1}, v{Fr}, v{Yi}
v_mov_b32 v{GR+1}, v{Yr}
v_mov_b32 v{GI+1}, v{Yi}
v_permlane32_swap_b32 v{Yr}, v{GR+1}
v_permlane32_swap_b32 v{Yi}, v{GI+1}
""")
BD = [CFV, CFV + 4, CFV + 8]
XF = [CFV + 12, CFV + 16, CFV + 20, CFV + 24, CFV + 28]
kq, ksh = gM, gM2
E(f"""
v_lshrrev_b32 v{kq}, 1, v{vI}
v_lshlrev_b32 v{ksh}, 2, v{vQ}
v_sub_u32 v{kq}, v{kq}, v{ksh}
v_and_b32 v{ksh}, 1, v{vI}
v_lshlrev_b32 v{ksh}, 4, v{ksh}
v_lshlrev_b32 v{pD}, v{ksh}, v{pD}
v_lshlrev_b32 v{pD+1}, v{ksh}, v{pD+1}
v_lshlrev_b32 v{pD+2}, v{ksh}, v{pD+2}
""")
for n in range(4):
    E(f"""
    v_cmp_eq_u32 vcc, {n}, v{kq}
    v_cndmask_b32 v{BD[0]+n}, 0, v{pD}, vcc
    v_cndmask_b32 v{BD[2]+n}, 0, v{pD+2}, vcc
    v_cmp_eq_u32 vcc, {n-8}, v{kq}
    v_cndmask_b32 v{BD[1]+n}, 0, v{pD+1}, vcc
    """)
E(f"""
v_lshlrev_b32 v{kq}, 6, v{vI}
v_lshl_add_u32 v{kq}, v{vQ}, 4, v{kq}
s_mul_i32 s{sT0}, s{sW}, 5120
s_add_u32 s{sT0}, s{sT0}, {L_XS}
v_add_u32 v{kq}, s{sT0}, v{kq}
""")
for s in range(5):
    E(f"ds_read_b128 {v4(XF[s])}, v{kq} offset:{s*1024}")
E(f"""
v_mul_f32 v{cLOCR}, v{cBQ}, v{Fr}
v_mul_f32 v{cLOCI}, v{cBQ}, v{Fi}
v_fma_f32 v{cLOCR}, v{cAQ}, v{Yr}, v{cLOCR}
v_fma_f32 v{cLOCI}, v{cAQ}, v{Yi}, v{cLOCI}
v_fma_f32 v{cLOCR}, -v{cAQ+1}, v{Yi}, v{cLOCR}
v_fma_f32 v{cLOCI}, v{cAQ+1}, v{Yr}, v{cLOCI}
v_fma_f32 v{cLOCR+1}, v{cMU}, v{cLOCR}, v{GR}
v_fma_f32 v{cLOCI+1}, v{cMU}, v{cLOCI}, v{GI}
v_fma_f32 v{cLOCR+1}, -v{cMU+1}, v{cLOCI}, v{cLOCR+1}
v_fma_f32 v{cLOCI+1}, v{cMU+1}, v{cLOCR}, v{cLOCI+1}
""")
for s in range(4):
    for t in range(2):
        E(f"v_mfma_f32_16x16x32_bf16 {v4(ACC2(s,t))}, {v4(XF[s])}, {v4(BD[t])}, 0")
E(f"v_mfma_f32_16x16x32_bf16 {v4(ACC8)}, {v4(XF[4])}, {v4(BD[2])}, 0")
P.add(mx_axpy(e1, cMKA, e0)); P.add(mx_axpy(e2, cMKA, e1)); P.add(mx_axpy(e3, cMKA, e2))
LOCM = mP
E(f"v_mov_b32 v{LOCM}, 0\nv_mov_b32 v{LOCM+1}, 0")
for w, src in ((1, e0), (2, e1), (3, e2)):
    E(f"""
    s_cmp_eq_u32 s{sW}, {w}
    s_cselect_b64 vcc, -1, 0
    v_cndmask_b32 v{LOCM}, v{LOCM}, v{src}, vcc
    v_cndmask_b32 v{LOCM+1}, v{LOCM+1}, v{src+1}, vcc
    """)
mX, mY, mS = e0, e0 + 1, e1
P.add(mx_axpy1(e3 + 1, cMMU, e3))
E(f"""
v_mov_b32 v{mX}, v{e3+1}
v_mov_b32 v{mY}, v{e3+1}
v_permlane16_swap_b32 v{mX}, v{mY}
""")
P.add(mx_axpy1(mY, cMNU, mX))
E(f"""
v_mov_b32 v{e2}, v{mY}
v_permlane32_swap_b32 v{mY}, v{e2}
v_mul_f32 v{mS}, v{cBQ}, v{mX}
""")
P.add(mx_axpy1(mS, cMAQ, mY))
E(f"v_mov_b32 v{mS+1}, v{e3}")
P.add(mx_axpy1(mS + 1, cMMU, mS))
P.add(mx_axpy(LOCM, cMKW, mS))
E(f"v_mov_b32 v{cAQ}, v{LOCM}\nv_mov_b32 v{cAQ+1}, v{LOCM+1}")
LOCM = cAQ
tp = vT
for s in range(16):
    ur, ui = U(s)
    tt = tp + 2 * (s & 1)
    P.add([pkmul(tt, cC1, ui, "h"), pkmul(ui, cC1, ui, "l"), pkfma(ui, cC1, ur, ui, "h"),
           f"v_pk_fma_f32 {v2(ur)}, {v2(cC1)}, {v2(ur)}, {v2(tt)} op_sel:[0,0,0] op_sel_hi:[0,1,1] neg_lo:[0,0,1] neg_hi:[0,0,1]"])
for s in range(4):
    um = UMs(s)
    tt = tp + 2 * (s & 1)
    P.add([f"v_mul_f32_dpp v{tt}, v{um}, v{cCM+1} {DPP8}", f"v_mul_f32_dpp v{tt+1}, v{um+1}, v{cCM+1} {DPP8}", pkfma(um, cCM, um, tt, "l")])
stamp()
E(f"s_mov_b32 s{sCNT}, 0")
E(f"v_cmp_gt_u32 vcc, 8, v{cchk}")
E("s_cbranch_vccz L_clr_ok")
P.label("L_clr_loop")
E(f"""
s_sleep 2
buffer_load_dword v{cchk}, v{vT+25}, {srd(sSRD_DBG)}, 0 offen sc1
s_add_u32 s{sCNT}, s{sCNT}, 1
s_cmp_gt_u32 s{sCNT}, {SPIN_MAX}
s_cbranch_scc1 L_clr_ok
s_waitcnt vmcnt(0)
v_cmp_gt_u32 vcc, 8, v{cchk}
s_cbranch_vccnz L_clr_loop
""")
P.label("L_clr_ok")
gA = [vT + 2 * kk for kk in range(4)]
gB = [vT + 8 + 4 * kk for kk in range(4)]
gX = vT + 24
E(f"s_mov_b32 s{sCNT}, 0")
P.label("L_g_loop")
for kk in range(4):
    E(f"buffer_load_dwordx2 {v2(gA[kk])}, v{vG1[kk]}, {srd(sSRD_AG)}, 0 offen sc1")
    E(f"buffer_load_dwordx4 {v4(gB[kk])}, v{vG2[kk]}, {srd(sSRD_AG)}, 0 offen sc1")
E(f"""
s_add_u32 s{sCNT}, s{sCNT}, 1
s_cmp_gt_u32 s{sCNT}, {SPIN_MAX}
s_waitcnt vmcnt(0)
""")
words = list(range(vT, vT + 24))
E(f"v_max3_u32 v{gX}, v{words[0]}, v{words[1]}, v{words[2]}")
E(f"v_max3_u32 v{gX+1}, v{words[3]}, v{words[4]}, v{words[5]}")
for n in range(6, 24, 4):
    E(f"v_max3_u32 v{gX}, v{gX}, v{words[n]}, v{words[n+1]}")
    if n + 3 < 24: E(f"v_max3_u32 v{gX+1}, v{gX+1}, v{words[n+2]}, v{words[n+3]}")
E(f"""
v_max_u32 v{gX}, v{gX}, v{gX+1}
v_cmp_eq_u32 vcc, -1, v{gX}
s_cbranch_scc1 L_g_ok
s_cbranch_vccnz L_g_loop
""")
P.label("L_g_ok")
stamp()
def chorner(T, Aa, R):
    return [pkfma(Aa, R, T, Aa, "l"), pkfma(Aa, R, T, Aa, "h", "s", neg0="lo")]
ga = []
for kk in (2, 1, 0): ga += chorner(gA[kk + 1], gA[kk], cR4)
ga += [pkmul(gA[1], cRQ, gA[0], "l"), pkfma(gA[1], cRQ, gA[0], gA[1], "h", "s", neg0="lo")]
gb = [f"v_pk_add_f32 {v2(gB[kk])}, {v2(gB[kk])}, {v2(gB[kk]+2)}" for kk in (3, 2, 1, 0)]
for kk in (2, 1, 0): gb += chorner(gB[kk + 1], gB[kk], cMR4)
gb += [pkmul(gB[1], cMRQ, gB[0], "l"), pkfma(gB[1], cMRQ, gB[0], gB[1], "h", "s", neg0="lo")]
P.add(interleave(gb, ga, start=3, every=1))
Ur, Ui, Vr, Vi = gA[1], gA[1] + 1, gB[1], gB[1] + 1
HR, HI, MR, MI = gA[2], gA[2] + 1, gA[3], gA[3] + 1
E(f"""
v_permlane16_swap_b32 v{Ur}, v{Ui}
v_permlane16_swap_b32 v{Vr}, v{Vi}
v_add_f32 v{Ur}, v{Ur}, v{Ui}
v_add_f32 v{Vr}, v{Vr}, v{Vi}
v_permlane32_swap_b32 v{Ur}, v{Vr}
v_add_f32 v{HR}, v{Ur}, v{Vr}
v_add_f32 v{MR}, v{Ur}, v{Vr}
v_permlane32_swap_b32 v{HR}, v{MR}
v_mov_b32 v{HI}, v{HR}
v_add_f32_dpp v{MI}, v{MR}, v{MR} {DPP8}
v_add_f32_dpp v{MR}, v{MR}, v{MR} {DPP8}
v_permlane16_swap_b32 v{HR}, v{HI}
v_permlane16_swap_b32 v{MR}, v{MI}
""")
P.add([pkfma(cLOCR, cGMr, HR, cLOCR, "n", "l"), pkfma(cLOCI, cGMr, HR, cLOCI, "n", "h"),
       pkfma(cLOCR, cGMi, HR, cLOCR, "n", "h", neg0="both"), pkfma(cLOCI, cGMi, HR, cLOCI, "n", "l"),
       pkfma(LOCM, cMX, MR, LOCM, "n", "l"), pkfma(LOCM, cMY, MR, LOCM, "n", "h")])
hsoff = {0: "0", 1: f"s{sK2}"}
hsoffI = {0: f"s{sK1}", 1: f"s{sK3}"}
p2 = []
hr, hi = cLOCR, cLOCI
for s in range(16):
    ur, ui = U(s)
    p2 += [pkfma(ur, cL1, hr, ur, "l"), pkfma(ui, cL1, hi, ui, "l"), pkfma(ur, cL1, hi, ur, "h", neg0="both"), pkfma(ui, cL1, hr, ui, "h")]
    hr, hi = ur, ui
    if s % 4 == 3:
        mp = s >> 2
        A_, B_ = UR(2 * mp), UR(2 * mp + 1)
        p2 += [f"v_cvt_pk_bf16_f32 v{A_}, v{A_}, v{A_+1}", f"v_cvt_pk_bf16_f32 v{A_+1}, v{A_+2}, v{A_+3}",
               f"v_cvt_pk_bf16_f32 v{A_+2}, v{B_}, v{B_+1}", f"v_cvt_pk_bf16_f32 v{A_+3}, v{B_+2}, v{B_+3}",
               Ins(f"buffer_store_dwordx4 {v4(A_)}, v{vHS}, {srd(sSRD_WS)}, {hsoff[mp>>1]} offen offset:{(mp&1)*1024} sc1", "hst")]
        A_, B_ = UI(2 * mp), UI(2 * mp + 1)
        p2 += [f"v_cvt_pk_bf16_f32 v{A_}, -v{A_}, -v{A_+1}", f"v_cvt_pk_bf16_f32 v{A_+1}, -v{A_+2}, -v{A_+3}",
               f"v_cvt_pk_bf16_f32 v{A_+2}, -v{B_}, -v{B_+1}", f"v_cvt_pk_bf16_f32 v{A_+3}, -v{B_+2}, -v{B_+3}",
               Ins(f"buffer_store_dwordx4 {v4(A_)}, v{vHS}, {srd(sSRD_WS)}, {hsoffI[mp>>1]} offen offset:{(mp&1)*1024} sc1", "hst")]
pm = []
hm = LOCM
for s in range(4):
    um = UMs(s)
    pm += mx_axpy(um, cLM, hm)
    hm = um
A_, B_ = UM(0), UM(1)
sgm = vT
pm += [f"v_cmp_lt_u32 vcc, 7, v{vI}", f"v_mov_b32 v{sgm}, 0x80008000", "s_nop 0", f"v_cndmask_b32 v{sgm}, 0, v{sgm}, vcc",
       f"v_cvt_pk_bf16_f32 v{A_}, v{A_}, v{A_+1}", f"v_cvt_pk_bf16_f32 v{A_+1}, v{A_+2}, v{A_+3}",
       f"v_cvt_pk_bf16_f32 v{A_+2}, v{B_}, v{B_+1}", f"v_cvt_pk_bf16_f32 v{A_+3}, v{B_+2}, v{B_+3}"]
pm += [f"v_xor_b32 v{A_+n}, v{sgm}, v{A_+n}" for n in range(4)]
pm += [Ins(f"buffer_store_dwordx4 {v4(A_)}, v{vHSM}, {srd(sSRD_WS)}, 0 offen sc1", "hst")]
P.add(interleave(p2, pm, start=1, every=3))
stamp()
for pc in range(6): P.add(c_read(pc))
P.wait_ds()
for pc in range(6, 12): P.add(flat(c_dma(pc)))
P.wait_vm("hst")
E(f"""
v_mov_b32 v{vT}, 1
s_mov_b32 exec_lo, 0
s_mov_b32 exec_hi, 0x10000
""")
E(f"buffer_store_dword v{vT}, v{vPUB}, {srd(sSRD_WS)}, 0 offen sc1", tag="flag")
E("s_mov_b64 exec, -1")
stamp()
for ks in range(24):
    E(f"ds_read_b128 {v4(C8V(ks))}, v{vR8[ks&1]} offset:{(ks>>1)*2048}")
w1, w2 = vT + 1, vT + 2
E(f"""
v_lshrrev_b32 v{w1}, 1, v{vQ}
v_lshlrev_b32 v{w1}, 11, v{w1}
v_lshrrev_b32 v{w2}, 2, v{vI}
v_lshl_add_u32 v{w1}, v{w2}, 4, v{w1}
v_bfe_u32 v{w2}, v{vI}, 1, 1
v_lshl_add_u32 v{w1}, v{w2}, 6, v{w1}
v_and_b32 v{w2}, 1, v{vQ}
v_lshl_add_u32 v{w1}, v{w2}, 7, v{w1}
v_and_b32 v{w2}, 1, v{vI}
v_lshl_add_u32 v{w1}, v{w2}, 9, v{w1}
v_lshl_add_u32 v{w1}, v{w2}, 3, v{w1}
s_and_b32 s{sT0}, s{sW}, 1
s_lshl_b32 s{sT0}, s{sT0}, 3
s_lshr_b32 s{sT1}, s{sW}, 1
s_lshl_b32 s{sT1}, s{sT1}, 10
s_or_b32 s{sT0}, s{sT0}, s{sT1}
v_xor_b32 v{vRH[0]}, s{sT0}, v{w1}
v_xor_b32 v{vRH[1]}, 8, v{vRH[0]}
v_xor_b32 v{vRH[2]}, 0x400, v{vRH[0]}
v_xor_b32 v{vRH[3]}, 0x408, v{vRH[0]}
v_and_b32 v{w2}, 1, v{vQ}
s_and_b32 s{sT0}, s{sW}, 1
v_xor_b32 v{w2}, s{sT0}, v{w2}
v_lshlrev_b32 v{w1}, 5, v{vQ}
v_lshl_add_u32 v{vO[0]}, v{w2}, 1, v{w1}
v_xor_b32 v{vO[1]}, 2, v{vO[0]}
v_mul_u32_u24 v{vO[0]}, 4608, v{vO[0]}
v_mul_u32_u24 v{vO[1]}, 4608, v{vO[1]}
s_mul_i32 s{sT0}, s{sC}, {128*4608}
s_mul_i32 s{sT1}, s{sHD}, 2304
s_add_u32 s{sT0}, s{sT0}, s{sT1}
s_mul_i32 s{sT1}, s{sE}, 576
s_add_u32 s{sT0}, s{sT0}, s{sT1}
v_lshlrev_b32 v{w1}, 2, v{vI}
v_add_u32 v{w1}, s{sT0}, v{w1}
v_add_u32 v{vO8}, v{vO[0]}, v{w1}
v_add_u32 v{vO8}, 512, v{vO8}
s_lshl_b32 s{sT1}, s{sW}, 7
v_add3_u32 v{vO[0]}, v{vO[0]}, v{w1}, s{sT1}
v_add3_u32 v{vO[1]}, v{vO[1]}, v{w1}, s{sT1}
""")
for pc in range(6, 12): P.add(c_read(pc))
P.wait_ds()
for pc in range(12, 18): P.add(flat(c_dma(pc)))
for pc in range(12, 18): P.add(c_read(pc))
P.wait_ds()
stamp()
vHD, vFA, vFD = vT + 8, vT + 9, vT + 10
E(f"""
v_lshlrev_b32 v{vHD}, 4, v{vL}
v_and_b32 v{vFA}, 31, v{vL}
v_lshlrev_b32 v{vFA}, 2, v{vFA}
v_add_u32 v{vFA}, s{sFLAGB}, v{vFA}
s_mov_b32 s{sCNT}, 0
s_lshl_b32 s{sT1}, s{sW}, 12
s_add_u32 s{sHSRC}, s{sHSRC}, s{sT1}
""")
P.label("L_f_loop")
E(f"""
buffer_load_dword v{vFD}, v{vFA}, {srd(sSRD_WS)}, 0 offen sc1
s_add_u32 s{sCNT}, s{sCNT}, 1
s_cmp_gt_u32 s{sCNT}, {SPIN_MAX}
s_waitcnt vmcnt(0)
v_cmp_ne_u32 vcc, 1, v{vFD}
s_cbranch_scc1 L_f_ok
s_cbranch_vccnz L_f_loop
""")
P.label("L_f_ok")
E("s_barrier")
stamp()
def h_dma(g):
    r = [[Ins(f"s_add_u32 m0, s{sT1}, {g*16384}"), Ins(f"s_add_u32 s{sKB}, s{sHSRC}, {g*16384}"),
          Ins(f"buffer_load_dwordx4 v{vHD}, {srd(sSRD_WS)}, s{sKB} offen sc1 lds", f"h{g}")]]
    for kk in (1, 2, 3):
        r.append([Ins(f"buffer_load_dwordx4 v{vHD}, {srd(sSRD_WS)}, s{sKB} offen offset:{1024*kk} sc1 lds", f"h{g}")])
    return r
def g2_reads(ks):
    b = ks & 1
    r = []
    if ks in (16, 32):
        r.append([Ins(f"v_add_u32 v{vRH[s]}, 0x10000, v{vRH[s]}") for s in range(4)])
    off = (ks % 16) * 4096
    for s in range(4):
        for rd in range(2):
            r.append(f"ds_read_b64_tr_b16 {v2(HF(b,s)+2*rd)}, v{vRH[s]} offset:{off+256*rd}")
    if ks >= 24:
        r.append(f"ds_read_b128 {v4(C8B(b))}, v{vR8[ks&1]} offset:{(ks>>1)*2048}")
    return r
def g2_mfma(ks):
    b = ks & 1
    r = []
    for s in range(4):
        for t in range(2):
            r.append(f"v_mfma_f32_16x16x32_bf16 {v4(ACC2(s,t))}, {v4(HF(b,s))}, {CF(ks,t)}, {v4(ACC2(s,t))}")
    c8 = v4(C8V(ks)) if ks < 24 else v4(C8B(b))
    r.append(f"v_mfma_f32_16x16x32_bf16 {v4(ACC8)}, {v4(HF(b,0))}, {c8}, {v4(ACC8)}")
    return r
HPRE = 3
for g in range(HPRE): P.add(flat(h_dma(g)))
P.wait_vm("h0")
E("s_barrier")
P.add(flat(g2_reads(0)))
pend = []
for ks in range(36):
    g = ks >> 2
    if ks % 4 == 0 and g + HPRE < 9: pend = h_dma(g + HPRE)
    if ks % 4 == 3 and g + 1 < 9:
        P.wait_vm(f"h{g+1}")
        E("s_barrier")
    rd = g2_reads(ks + 1) if ks + 1 < 36 else []
    body = []
    for gi, m in enumerate(g2_mfma(ks)):
        body.append(m)
        for _ in range(2 if gi == 0 else 1):
            if rd:
                x = rd.pop(0); body += x if isinstance(x, list) else [x]
        if gi in (3, 7) and pend and ks % 4 < 3: body += pend.pop(0)
    for x in rd: body += x if isinstance(x, list) else [x]
    P.add(body)
stamp()
for s in range(4):
    for r in range(4):
        for t in range(2):
            E(f"buffer_store_dword v{ACC2(s,t)+r}, v{vO[s&1]}, {srd(sSRD_OUT)}, s{sSO+4*(s>>1)+r} offen offset:{64*t} {args.ost}")
for r in range(4):
    E(f"buffer_store_dword v{ACC8+r}, v{vO8}, {srd(sSRD_OUT)}, s{sSO+r} offen {args.ost}")
if AMP >= 0:
    E("s_waitcnt vmcnt(0)")
    E("s_memrealtime s[66:67]")
    E("s_waitcnt lgkmcnt(0)")
    src = "s66" if AMP >= nstamp[0] else f"s{sSTAMP+2*AMP}"
    E(f"s_sub_u32 s68, {src}, s75\ns_lshl_b32 s68, s68, 2\ns_min_u32 s68, s68, 100000")
    P.label("L_amp")
    E("""
    s_sleep 1
    s_memrealtime s[70:71]
    s_waitcnt lgkmcnt(0)
    s_sub_u32 s70, s70, s66
    s_cmp_lt_u32 s70, s68
    s_cbranch_scc1 L_amp
    """)
elif PROF:
    E("s_waitcnt vmcnt(0)")
    E("s_memtime s[64:65]")
    E("s_memrealtime s[66:67]")
    E("s_waitcnt lgkmcnt(0)")
    E(f"v_mov_b32 v{vT}, 0")
    PROFW = [("s75", None), ("s66", None)] + [(f"s{sSTAMP+2*n}", 1) for n in range(nstamp[0])] + [("s64", 1)]
    for n, (sr, sub) in enumerate(PROFW):
        if sub: E(f"s_sub_u32 {sr}, {sr}, s74")
        E(f"v_writelane_b32 v{vT}, {sr}, {n}")
    E(f"s_getreg_b32 s{sT0}, hwreg(HW_REG_XCC_ID)")
    E(f"v_writelane_b32 v{vT}, s{sT0}, 15")
    E(f"""
    s_lshl_b32 s{sT0}, s2, 8
    s_lshl_b32 s{sT1}, s{sW}, 6
    s_add_u32 s{sT0}, s{sT0}, s{sT1}
    s_add_u32 s{sT0}, s{sT0}, {WS_PROF}
    v_lshlrev_b32 v{vT+1}, 2, v{vL}
    s_mov_b32 exec_hi, 0
    s_mov_b32 exec_lo, 0xffff
    buffer_store_dword v{vT}, v{vT+1}, {srd(sSRD_WS)}, s{sT0} offen
    """)
    if args.dbgprof:
        E(f"""
        s_not_b32 s75, s75
        v_writelane_b32 v{vT}, s75, 0
        s_cmp_lg_u32 s{sW}, 0
        s_cbranch_scc1 L_end
        buffer_atomic_umax v{vT}, v{vT+1}, {srd(sSRD_DBG)}, 0 offen sc1
        """)
P.label("L_end")
E("s_endpgm")
P.label("L_code_end")

hdr = open("concat_heads__ssm_conv_s5__ssm_conv_s5__prompt.s.ref").read().split("\n")
head = [l for l in hdr if l.startswith(";") and "@launch" not in l and "Override" not in l and "grid=ceil" not in l]
if args.tiny:
    ml = f"; @launch kernel={NAME} grid=(256,1,1) block=(256,1,1) lds={LDS_TOTAL}\n"
    tl = "; @launch kernel=tiny_kernel grid=(256,1,1) block=(64,1,1) lds=0\n"
    txt = "\n".join(head) + "\n" + (ml + tl if args.tiny == 1 else tl + ml if args.tiny == 2 else ml)
else:
    txt = "\n".join(head) + f"\n; @launch grid=(256,1,1) block=(256,1,1) lds={LDS_TOTAL}\n"
txt += f""".amdgcn_target "amdgcn-amd-amdhsa--gfx950"
.text
.globl {NAME}
.p2align 8
.type {NAME},@function
.set CODE_LAST, @CODELAST@
{NAME}:
"""
txt += P.finalize()
if args.tiny in (1, 2):
    txt += """
.globl tiny_kernel
.p2align 8
.type tiny_kernel,@function
tiny_kernel:
    s_endpgm
.section .rodata,"a"
.p2align 6
.amdhsa_kernel tiny_kernel
  .amdhsa_next_free_vgpr 8
  .amdhsa_next_free_sgpr 16
  .amdhsa_accum_offset 8
  .amdhsa_group_segment_fixed_size 0
  .amdhsa_kernarg_size 168
  .amdhsa_user_sgpr_count 2
  .amdhsa_user_sgpr_kernarg_segment_ptr 1
  .amdhsa_system_sgpr_workgroup_id_x 1
.end_amdhsa_kernel
"""
txt += f"""
.section .rodata,"a"
.p2align 6
.amdhsa_kernel {NAME}
  .amdhsa_next_free_vgpr 512
  .amdhsa_next_free_sgpr 102
  .amdhsa_accum_offset 256
  .amdhsa_group_segment_fixed_size 0
  .amdhsa_kernarg_size 168
  .amdhsa_user_sgpr_count 2
  .amdhsa_user_sgpr_kernarg_segment_ptr 1
  .amdhsa_system_sgpr_workgroup_id_x 1
.end_amdhsa_kernel
"""
import subprocess, re, tempfile, os
def code_last(t):
    with tempfile.TemporaryDirectory() as d:
        open(d + "/a.s", "w").write(t.replace("@CODELAST@", "0x1234"))
        subprocess.run(["clang", "-x", "assembler", "-target", "amdgcn-amd-amdhsa", "-mcpu=gfx950", "-c", d + "/a.s", "-o", d + "/a.o"], check=True)
        o = subprocess.run(["llvm-objdump", "-t", d + "/a.o"], capture_output=True, text=True).stdout
        sym = {}
        for l in o.splitlines():
            m = re.match(r"([0-9a-f]+) .* (L_\w+)$", l)
            if m: sym[m.group(2)] = int(m.group(1), 16)
        return sym["L_code_end"] - sym["L_pc"] - 4
cl = code_last(txt)
assert cl < 32768
txt = txt.replace("@CODELAST@", str(cl))
open(args.o, "w").write(txt)
print("code bytes", cl)
```
